```python
import torch

def _softmax(x, axis=-1):
    return torch.softmax(x, dim=axis)
def _gelu(x):
    return torch.nn.functional.gelu(x, approximate="tanh")
def _silu(x):
    return torch.nn.functional.silu(x)
def _sigmoid(x):
    return torch.sigmoid(x)
def _layernorm(x, axis=-1, eps=1e-5):
    m = x.mean(dim=axis, keepdim=True)
    v = x.var(dim=axis, keepdim=True, unbiased=False)
    return (x - m) / torch.sqrt(v + eps)
def _scatter_add(tgt, idx, src, axis=0):
    return tgt.clone().index_add_(axis, idx, src)
def _segment_sum(src, seg, n):
    out = torch.zeros((n,) + src.shape[1:], dtype=src.dtype)
    return out.index_add_(0, seg, src)
def _pad(x, pw):
    flat = tuple(v for pair in reversed(pw) for v in pair)
    return torch.nn.functional.pad(x, flat)

kernel_name = 'recurrent_scan__spectral_gfnet__glu_gated_swiglu__prompt'

def setup_inputs():

    _w = (lambda a: (lambda t: t.to(torch.bfloat16) if t.is_floating_point() else t)(torch.as_tensor(a)))
    def _A_setup():
        B, S, D = 1, 2048, 640
        Df = D // 2 + 1
        return {
            "x": _w((lambda *s: torch.randn(*s, dtype=torch.bfloat16) * 0.2)(B, S, D)),
            "w_r": _w((lambda *s: torch.randn(*s, dtype=torch.bfloat16) * 1.6)(S, Df) * 0.02),
            "w_i": _w((lambda *s: torch.randn(*s, dtype=torch.bfloat16) * 1.6)(S, Df) * 0.02),
        }
    _A_in = _A_setup()

    def _B_setup():
        B, S, D, F = 1, 2048, 640, 1536
        return {
            "x": _w((lambda *s: torch.randn(*s, dtype=torch.bfloat16) * 0.2)(B, S, D)),
            "w1": _w((lambda *s: torch.randn(*s, dtype=torch.bfloat16) * 0.8)(D, F) * (2.0 / D) ** 0.5),
            "w3": _w((lambda *s: torch.randn(*s, dtype=torch.bfloat16) * 0.8)(D, F) * (2.0 / D) ** 0.5),
            "w2": _w((lambda *s: torch.randn(*s, dtype=torch.bfloat16) * 0.8)(F, D) * (2.0 / F) ** 0.5),
        }
    _B_in = _B_setup()

    return {
        "A_x": _A_in["x"],
        "A_w_r": _A_in["w_r"],
        "A_w_i": _A_in["w_i"],
        "B_x": _B_in["x"],
        "B_w1": _B_in["w1"],
        "B_w3": _B_in["w3"],
        "B_w2": _B_in["w2"],
    }

def reference(A_x, A_w_r, A_w_i, B_x, B_w1, B_w3, B_w2):
    def _A_ref(x, w_r, w_i):
        B, S, D = x.shape
        X = (lambda x, axes=(-2,-1): torch.fft.rfft2(x.float(), dim=axes))(x, axes=(-2, -1))
        W = w_r + 1j * w_i
        X = X * W
        y = (lambda x, s, axes=(-2,-1): torch.fft.irfft2(x, s=s, dim=axes).to(torch.bfloat16))(X, (S, D), axes=(-2, -1))
        return y

    def _B_ref(x, w1, w3, w2):
        gate = torch.einsum("bsd,df->bsf", x, w1)
        up = torch.einsum("bsd,df->bsf", x, w3)
        h = _silu(gate) * up
        out = torch.einsum("bsf,fd->bsd", h, w2)
        return out

    x = A_x
    xn = _layernorm(x, axis=-1)
    s = _A_ref(xn, A_w_r, A_w_i)
    g = _silu(_B_ref(xn, B_w1, B_w3, B_w2))
    return x + s * g
```

```python
import re
import struct

TRANS = ('v_exp_f32', 'v_log_f32', 'v_rcp_f32', 'v_rsq_f32', 'v_sqrt_f32', 'v_sin_f32', 'v_cos_f32',
         'v_rcp_iflag_f32')


def f2u(x):
    return struct.unpack('<I', struct.pack('<f', x))[0]


def flit(x):
    return '0x%08x' % f2u(x)


def v(n, c=1):
    return f'v{n}' if c == 1 else f'v[{n}:{n + c - 1}]'


def s(n, c=1):
    return f's{n}' if c == 1 else f's[{n}:{n + c - 1}]'


_REG = re.compile(r'^(?:-|\|)?(?:abs\()?([vsa])(\d+|\[(\d+):(\d+)\])\)?\|?$')


def regs_of(tok):
    tok = tok.strip()
    if tok in ('vcc', 'vcc_lo', 'vcc_hi'):
        return {('vcc', 0)}
    if tok in ('exec', 'exec_lo', 'exec_hi'):
        return {('exec', 0)}
    if tok == 'm0':
        return {('m0', 0)}
    m = _REG.match(tok)
    if not m:
        return set()
    kind = m.group(1)
    if m.group(3) is not None:
        return {(kind, i) for i in range(int(m.group(3)), int(m.group(4)) + 1)}
    return {(kind, int(m.group(2)))}


class Ins:
    __slots__ = ('text', 'mn', 'cls', 'wr', 'rd', 'passes', 'dpp', 'trans', 'srcc', 'srcab', 'dst', 'wide_store',
                 'lds_dma', 'ws', 'dot', 'permlane', 'readlane')

    def __init__(self, text):
        self.text = text
        t = text.split(';')[0].strip()
        parts = t.split(None, 1)
        mn = parts[0]
        self.mn = mn
        rest = parts[1] if len(parts) > 1 else ''
        ops, depth, cur = [], 0, ''
        for ch in rest:
            if ch == '[':
                depth += 1
            if ch == ']':
                depth -= 1
            if ch == ',' and depth == 0:
                ops.append(cur.strip())
                cur = ''
            else:
                cur += ch
        if cur.strip():
            ops.append(cur.strip())
        mods = ''
        if ops:
            lp = ops[-1].split(None, 1)
            ops[-1] = lp[0]
            mods = lp[1] if len(lp) > 1 else ''
        self.wr, self.rd = set(), set()
        self.passes = 0
        self.dpp = ('quad_perm' in mods) or ('row_' in mods) or mn.endswith('_dpp')
        base = mn.replace('_e32', '').replace('_e64', '').replace('_dpp', '')
        self.trans = base in TRANS
        self.srcc, self.srcab, self.dst = set(), set(), set()
        self.wide_store = False
        self.lds_dma = False
        self.ws = 1
        self.dot = base.startswith('v_dot')
        self.permlane = base.startswith('v_permlane')
        self.readlane = base in ('v_readfirstlane_b32', 'v_readlane_b32')
        R = [regs_of(o) for o in ops]
        if mn == 's_nop':
            self.cls = 'nop'
            self.ws = int(ops[0], 0) + 1
        elif mn.startswith('v_mfma'):
            self.cls = 'mfma'
            self.passes = 8 if '32x32' in mn else 4
            self.dst = R[0]
            self.wr = set(R[0])
            self.srcab = R[1] | R[2]
            self.srcc = R[3]
            self.rd = self.srcab | self.srcc
        elif mn.startswith('v_'):
            self.cls = 'valu'
            if base.startswith('v_cmp'):
                self.wr = set(R[0])
                for r in R[1:]:
                    self.rd |= r
                if base.startswith('v_cmpx'):
                    self.wr |= {('exec', 0)}
            elif base in ('v_add_co_u32', 'v_sub_co_u32', 'v_addc_co_u32', 'v_subb_co_u32', 'v_subrev_co_u32'):
                self.wr = R[0] | R[1]
                for r in R[2:]:
                    self.rd |= r
            elif self.permlane:
                self.wr = R[0] | R[1]
                self.rd = R[0] | R[1]
            else:
                self.wr = set(R[0])
                for r in R[1:]:
                    self.rd |= r
                if base in ('v_fmac_f32', 'v_dot2c_f32_bf16', 'v_pk_fmac_f16', 'v_writelane_b32') or 'd16' in base:
                    self.rd |= R[0]
                if self.dpp:
                    self.rd |= R[0]
                if base == 'v_cndmask_b32' and len(ops) == 3:
                    self.rd |= {('vcc', 0)}
        elif mn.startswith('buffer_') or mn.startswith('global_'):
            self.cls = 'vmem'
            is_lds = re.search(r'\blds\b', mods) is not None or '_lds_' in mn
            if is_lds:
                self.lds_dma = True
                for r in R:
                    self.rd |= r
                self.rd |= {('m0', 0)}
            elif '_load' in mn:
                self.wr = set(R[0])
                for r in R[1:]:
                    self.rd |= r
                if 'd16' in mn:
                    self.rd |= R[0]
            else:
                for r in R:
                    self.rd |= r
                if 'x4' in mn or 'x3' in mn:
                    self.wide_store = True
                    self.dst = R[0] if mn.startswith('buffer_') else R[1]
        elif mn.startswith('ds_'):
            self.cls = 'ds'
            if mn.startswith('ds_read') or 'permute' in mn or 'swizzle' in mn:
                self.wr = set(R[0])
                for r in R[1:]:
                    self.rd |= r
            else:
                for r in R:
                    self.rd |= r
        elif mn.startswith('s_'):
            self.cls = 'salu'
            if mn.startswith('s_cmp') or mn.startswith('s_cbranch') or mn in (
                    's_branch', 's_barrier', 's_waitcnt', 's_endpgm', 's_setprio', 's_sleep'):
                for r in R:
                    self.rd |= r
            else:
                if R:
                    self.wr = set(R[0])
                for r in R[1:]:
                    self.rd |= r
                if 'saveexec' in mn:
                    self.wr |= {('exec', 0)}
        else:
            raise ValueError('unknown instruction ' + text)


def need(p, c):
    n = 0
    vw = {r for r in p.wr if r[0] in 'va'}
    if p.cls == 'valu':
        if c.cls == 'mfma' and vw & c.rd:
            n = max(n, 2)
        sw = {r for r in p.wr if r[0] in ('s', 'vcc')}
        if sw:
            if c.cls == 'vmem' and sw & c.rd:
                n = max(n, 5)
            if c.cls == 'valu' and sw & c.rd:
                n = max(n, 4 if c.mn.startswith('v_readlane') or c.mn.startswith('v_writelane') else 2)
            if c.cls == 'salu' and sw & c.rd:
                n = max(n, 2)
        if c.cls == 'valu' and vw & c.rd:
            if c.readlane:
                n = max(n, 1)
            if p.trans and not c.trans:
                n = max(n, 1)
            if c.dpp:
                n = max(n, 2)
            if c.permlane:
                n = max(n, 2)
        if p.dot and (vw & (c.rd | c.wr)):
            if not (c.dot and c.mn == p.mn and not (vw & (c.rd - c.wr))):
                n = max(n, 3)
        if ('exec', 0) in p.wr:
            if c.cls == 'mfma' or c.readlane or c.permlane:
                n = max(n, 4)
            if c.dpp:
                n = max(n, 5)
    if p.cls == 'mfma':
        big = {4: 8, 8: 12}[p.passes]
        if c.cls == 'mfma':
            if p.dst & c.srcab:
                n = max(n, big)
            if p.dst & c.srcc:
                if not (p.dst == c.srcc and p.passes == c.passes):
                    n = max(n, big - 2)
            elif p.dst & c.dst:
                n = max(n, big)
        elif c.cls in ('valu', 'vmem', 'ds'):
            if p.dst & (c.rd | c.wr):
                n = max(n, big)
            if c.cls == 'valu' and p.srcc & c.wr:
                n = max(n, {4: 3, 8: 7}[p.passes])
    if p.cls == 'salu' and ('m0', 0) in p.wr and c.lds_dma:
        n = max(n, 1)
    if p.cls == 'vmem' and p.wide_store and p.dst & c.wr:
        n = max(n, 2 if c.cls == 'valu' else 1)
    return n


class Prog:
    def __init__(self):
        self.items = []

    def __call__(self, text):
        for line in text.strip().split('\n'):
            line = line.strip()
            if line:
                self.items.append(('i', Ins(line)))

    def raw(self, text):
        self.items.append(('t', text))

    def label(self, name, pad=0):
        self.items.append(('t', name + ':'))
        if pad:
            self('s_nop %d' % (pad - 1))

    def comment(self, text):
        self.items.append(('t', '    ; ' + text))

    def loop_begin(self, name):
        self.items.append(('loop_begin', name))

    def loop_end(self):
        self.items.append(('loop_end',))

    @staticmethod
    def _scan(seq, hist, pads):
        hist = list(hist)
        for k, c in enumerate(seq):
            dist = pads[k]
            req = 0
            for p in reversed(hist):
                if dist >= 20:
                    break
                n = need(p, c)
                if n > dist:
                    req = max(req, n - dist + pads[k])
                dist += p.ws
            if req > pads[k]:
                pads[k] = req
            if pads[k]:
                hist.append(Ins('s_nop %d' % (pads[k] - 1)))
            hist.append(c)
            hist = hist[-24:]
        return hist

    def render(self):
        out = []
        hist = []
        i = 0
        items = self.items
        while i < len(items):
            it = items[i]
            if it[0] == 't':
                out.append(it[1])
                i += 1
            elif it[0] == 'i':
                pads = [0]
                hist = self._scan([it[1]], hist, pads)
                if pads[0]:
                    out.append('    s_nop %d' % (pads[0] - 1))
                out.append('    ' + it[1].text)
                i += 1
            elif it[0] == 'loop_begin':
                j = i + 1
                while items[j][0] != 'loop_end':
                    assert items[j][0] != 'loop_begin', 'nested loops unsupported'
                    j += 1
                body = items[i + 1:j]
                seq = [b[1] for b in body if b[0] == 'i']
                pads = [0] * len(seq)
                for _ in range(4):
                    h1 = self._scan(seq, hist, pads)
                    h2 = self._scan(seq, h1, pads)
                hist = self._scan(seq, h2, pads)
                out.append(it[1] + ':')
                k = 0
                for b in body:
                    if b[0] == 't':
                        out.append(b[1])
                    else:
                        if pads[k]:
                            out.append('    s_nop %d' % (pads[k] - 1))
                        out.append('    ' + b[1].text)
                        k += 1
                i = j + 1
            else:
                raise ValueError(it)
        return '\n'.join(out) + '\n'
```

```python
import numpy as np
from asmlib import *

S, D, F = 2048, 640, 1536
XN_OFF, XN_BYTES = 0x0, 2048 * 640 * 2
T_OFF, T_BYTES = 0x400000, 2048 * 640 * 2
U_OFF, U_BYTES = 0x800000, 2048 * 640 * 2
H_OFF, H_BYTES = 0xC00000, 2048 * 1536 * 2
G_OFF, G_BYTES = 0x1400000, 819200
W_BYTES = 2048 * 321 * 2
W13_BYTES = 640 * 1536 * 2
W2_BYTES = 1536 * 640 * 2


def srd(p, d, base, off, nbytes):
    if off:
        p(f's_add_u32 {s(d)}, {s(base)}, {off}')
        p(f's_addc_u32 {s(d + 1)}, {s(base + 1)}, 0')
    else:
        p(f's_mov_b32 {s(d)}, {s(base)}')
        p(f's_mov_b32 {s(d + 1)}, {s(base + 1)}')
    p(f's_mov_b32 {s(d + 2)}, {nbytes}')
    p(f's_mov_b32 {s(d + 3)}, 0x00020000')


def bf16_bits(x):
    x = np.asarray(x, dtype=np.float32)
    u = x.view(np.uint32).astype(np.uint64)
    r = (u + 0x7FFF + ((u >> 16) & 1)) >> 16
    return r.astype(np.uint16)


def emit_table(name, arr_f32):
    b = bf16_bits(np.asarray(arr_f32).astype(np.float32).ravel())
    w = b[0::2].astype(np.uint32) | (b[1::2].astype(np.uint32) << 16)
    out = ['.p2align 8', f'{name}:']
    for i in range(0, len(w), 8):
        out.append('  .long ' + ', '.join('0x%08x' % x for x in w[i:i + 8]))
    return '\n'.join(out) + '\n'


def cosf(num, den):
    return float(np.cos(2 * np.pi * (num % den) / den))


def sinf(num, den):
    r = num % den
    if (2 * r) % den == 0:
        return 0.0
    return float(np.sin(2 * np.pi * r / den))


def cosx(num, den):
    r = num % den
    if (4 * r) % den == 0 and ((4 * r) // den) % 2 == 1:
        return 0.0
    return float(np.cos(2 * np.pi * r / den))


def tbl_e32f():
    out = []
    for kind in range(3):
        for mt in range(2):
            for lane in range(64):
                m, q = lane & 15, lane >> 4
                ka = 16 * mt + m
                for t in range(8):
                    a = 4 * q + t if t < 4 else 16 + 4 * q + (t - 4)
                    val = [cosx(a * ka, 32), sinf(a * ka, 32), -sinf(a * ka, 32)][kind]
                    out.append(val)
    return emit_table('TBL_E32F', out)


def tbl_e64():
    out = []
    for kind in range(2):
        for mt in range(2):
            for kk in range(4):
                for lane in range(64):
                    m, h = lane & 31, lane >> 5
                    row = 32 * mt + m
                    for t in range(8):
                        b = 16 * kk + 8 * (t >> 2) + 4 * h + (t & 3)
                        out.append([cosx(row * b, 64), sinf(row * b, 64)][kind])
    return emit_table('TBL_E64', out)


def tbl_e32i():
    out = []
    for kind in range(2):
        for nt in range(2):
            for lane in range(64):
                n, q = lane & 15, lane >> 4
                ap = 16 * nt + n
                for t in range(8):
                    ka = 4 * q + t if t < 4 else 16 + 4 * q + (t - 4)
                    out.append([cosx(ap * ka, 32), sinf(ap * ka, 32)][kind])
    return emit_table('TBL_E32I', out)
```

```python
from asmlib import *
from common import *

NG_WG = 200
K1_MAIN = 320
K1_GRID = K1_MAIN + NG_WG


def rot(p, dst, src, R, tmp):
    p(f'v_pk_mul_f32 {v(tmp, 2)}, {v(src, 2)}, {v(R, 2)} op_sel_hi:[1,0]')
    p(f'v_pk_fma_f32 {v(dst, 2)}, {v(src, 2)}, {v(R, 2)}, {v(tmp, 2)} op_sel:[1,1,0] op_sel_hi:[0,1,1] neg_lo:[1,0,0]')


def mod640_cs(p, dst, vint, t0, t1, negate):
    p(f'v_cvt_f32_u32 {v(t0)}, {v(vint)}')
    p(f'v_mul_f32 {v(t1)}, {flit(1.0 / 640.0)}, {v(t0)}')
    p(f'v_floor_f32 {v(t1)}, {v(t1)}')
    p(f'v_fmac_f32 {v(t0)}, {flit(-640.0)}, {v(t1)}')
    p(f'v_mul_f32 {v(t0)}, {flit((-1.0 if negate else 1.0) / 640.0)}, {v(t0)}')
    p(f'v_cos_f32 {v(dst)}, {v(t0)}')
    p(f'v_sin_f32 {v(dst + 1)}, {v(t0)}')


def gen_k1(p):
    name = 'k1_kernel'
    p.raw(f'.globl {name}\n.p2align 8\n.type {name},@function\n{name}:')
    sX, sWS = 4, 6
    SRD_X, SRD_XN, SRD_T, SRD_G = 8, 12, 16, 20
    sTB = 24
    sB, sJ, sW, sBoff, sTmp, sTmp2 = 26, 27, 28, 29, 30, 31
    sRow = 32
    sNegB = 40
    p(f's_cmp_ge_u32 s2, {K1_GRID}')
    p('s_cbranch_scc1 K1_END')
    p(f's_load_dwordx2 {s(sX, 2)}, s[0:1], 0')
    p(f's_load_dwordx2 {s(sWS, 2)}, s[0:1], 72')
    p(f's_getpc_b64 {s(sTB, 2)}')
    p(f's_add_u32 {s(sTB)}, {s(sTB)}, TBL_E32F@rel32@lo+4')
    p(f's_addc_u32 {s(sTB + 1)}, {s(sTB + 1)}, TBL_E32F@rel32@hi+12')
    vLane, vT0, vT1, vT2, vT3 = 1, 2, 3, 4, 5
    p(f'v_lshrrev_b32 {v(vT0)}, 6, v0')
    p(f'v_and_b32 {v(vLane)}, 63, v0')
    p(f'v_readfirstlane_b32 {s(sW)}, {v(vT0)}')
    p(f's_cmp_ge_u32 s2, {K1_MAIN}')
    p('s_cbranch_scc1 K1_GROLE')

    p(f's_and_b32 {s(sB)}, s2, 63')
    p(f's_lshr_b32 {s(sJ)}, s2, 6')
    p(f's_mul_i32 {s(sBoff)}, {s(sB)}, 1280')
    vOffX, vA, vP = 6, 7, 8
    p(f'v_lshrrev_b32 {v(vA)}, 3, v0')
    p(f'v_and_b32 {v(vP)}, 7, v0')
    p(f's_mov_b32 {s(sTmp)}, 81920')
    p(f'v_mul_lo_u32 {v(vOffX)}, {v(vA)}, {s(sTmp)}')
    p(f'v_lshl_add_u32 {v(vOffX)}, {v(vP)}, 4, {v(vOffX)}')
    p('s_waitcnt lgkmcnt(0)')
    srd(p, SRD_X, sX, 0, XN_BYTES)
    srd(p, SRD_XN, sWS, XN_OFF, XN_BYTES)
    srd(p, SRD_T, sWS, T_OFF, T_BYTES)
    RAW = 16
    for i in range(10):
        p(f'buffer_load_dwordx4 {v(RAW + 4 * i, 4)}, {v(vOffX)}, {s(SRD_X, 4)}, {s(sBoff)} offen offset:{128 * i}')
    E32 = 72
    p(f'v_lshlrev_b32 {v(vT0)}, 4, {v(vLane)}')
    for f in range(4):
        p(f'global_load_dwordx4 {v(E32 + 4 * f, 4)}, {v(vT0)}, {s(sTB, 2)} offset:{1024 * f}')
    p(f'v_add_u32 {v(vT1)}, 4096, {v(vT0)}')
    for f in range(4, 6):
        p(f'global_load_dwordx4 {v(E32 + 4 * f, 4)}, {v(vT1)}, {s(sTB, 2)} offset:{1024 * (f - 4)}')

    vKd, vQ, vM = 9, 10, 11
    FR = 96
    S_, Pa, Pb, R1, R32, TMP = 56, 58, 60, 62, 64, 66
    p(f'v_and_b32 {v(vM)}, 15, {v(vLane)}')
    p(f'v_lshrrev_b32 {v(vQ)}, 4, {v(vLane)}')
    p(f's_lshl_b32 {s(sTmp)}, {s(sJ)}, 6')
    p(f's_lshl_b32 {s(sTmp2)}, {s(sW)}, 4')
    p(f's_add_u32 {s(sTmp)}, {s(sTmp)}, {s(sTmp2)}')
    p(f'v_add_u32 {v(vKd)}, {s(sTmp)}, {v(vM)}')
    p(f'v_mul_u32_u24 {v(vT2)}, {v(vKd)}, {v(vQ)}')
    p(f'v_lshlrev_b32 {v(vT2)}, 3, {v(vT2)}')
    mod640_cs(p, S_, vT2, vT0, vT1, True)
    mod640_cs(p, R1, vKd, vT0, vT1, True)
    p(f'v_lshlrev_b32 {v(vT2)}, 5, {v(vKd)}')
    mod640_cs(p, R32, vT2, vT0, vT1, True)
    for kk in range(20):
        fc, fs = FR + 8 * kk, FR + 8 * kk + 4
        rot(p, Pa, S_, R1, TMP)
        p(f'v_cvt_pk_bf16_f32 {v(fc)}, {v(S_)}, {v(Pa)}')
        p(f'v_cvt_pk_bf16_f32 {v(fs)}, {v(S_ + 1)}, {v(Pa + 1)}')
        if kk < 19:
            rot(p, S_, S_, R32, TMP + 2)
        for e in range(1, 4):
            rot(p, Pb, Pa, R1, TMP)
            rot(p, Pa, Pb, R1, TMP)
            p(f'v_cvt_pk_bf16_f32 {v(fc + e)}, {v(Pb)}, {v(Pa)}')
            p(f'v_cvt_pk_bf16_f32 {v(fs + e)}, {v(Pb + 1)}, {v(Pa + 1)}')
    p(f's_or_b32 {s(sTmp)}, {s(sJ)}, {s(sW)}')
    p(f's_cmp_lg_u32 {s(sTmp)}, 0')
    p('s_cbranch_scc1 K1_NOSPECIAL')
    p(f'v_cmp_eq_u32 vcc, 0, {v(vM)}')
    p('s_and_saveexec_b64 s[42:43], vcc')
    for kk in range(20):
        for e in range(4):
            p(f'v_mov_b32 {v(FR + 8 * kk + 4 + e)}, 0xbf803f80')
    p('s_mov_b64 exec, s[42:43]')
    p.label('K1_NOSPECIAL', pad=2)

    p('s_waitcnt vmcnt(0)')
    A0, A1, A2, A3 = 56, 57, 58, 59
    vOnes = 60
    p(f'v_mov_b32 {v(vOnes)}, 0x3f803f80')
    for a in range(4):
        p(f'v_mov_b32 {v(A0 + a)}, 0')
    for i in range(40):
        p(f'v_dot2_f32_bf16 {v(A0 + i % 4)}, {v(RAW + i)}, {v(vOnes)}, {v(A0 + i % 4)}')
    p(f'v_add_f32 {v(A0)}, {v(A0)}, {v(A1)}')
    p(f'v_add_f32 {v(A2)}, {v(A2)}, {v(A3)}')
    p(f'v_add_f32 {v(A0)}, {v(A0)}, {v(A2)}')

    def red8(r):
        p(f'v_add_f32_dpp {v(r)}, {v(r)}, {v(r)} quad_perm:[1,0,3,2] row_mask:0xf bank_mask:0xf')
        p(f'v_add_f32_dpp {v(r)}, {v(r)}, {v(r)} quad_perm:[2,3,0,1] row_mask:0xf bank_mask:0xf')
        p(f'v_add_f32_dpp {v(r)}, {v(r)}, {v(r)} row_half_mirror row_mask:0xf bank_mask:0xf')
    red8(A0)
    vMean, vMb, vDel = 56, 62, 57
    p(f'v_mul_f32 {v(vMean)}, {flit(1.0 / 640.0)}, {v(A0)}')
    p(f'v_cvt_pk_bf16_f32 {v(vMb)}, {v(vMean)}, {v(vMean)}')
    p(f'v_lshlrev_b32 {v(vMb)}, 16, {v(vMb)}')
    p(f'v_sub_f32 {v(vDel)}, {v(vMean)}, {v(vMb)}')
    SQ = [58, 60]
    TP = [64, 66, 68, 70]
    p(f'v_mov_b32 {v(vT0)}, 0xffff0000')
    for q_ in range(4):
        p(f'v_mov_b32 {v(58 + q_)}, 0')
    for i in range(40):
        t = TP[i % 4]
        p(f'v_lshlrev_b32 {v(t)}, 16, {v(RAW + i)}')
        p(f'v_and_b32 {v(t + 1)}, {v(vT0)}, {v(RAW + i)}')
        p(f'v_pk_add_f32 {v(t, 2)}, {v(t, 2)}, {v(vMb, 2)} op_sel_hi:[1,0] neg_lo:[0,1] neg_hi:[0,1]')
        p(f'v_pk_fma_f32 {v(SQ[i % 2], 2)}, {v(t, 2)}, {v(t, 2)}, {v(SQ[i % 2], 2)}')
        p(f'v_cvt_pk_bf16_f32 {v(RAW + i)}, {v(t)}, {v(t + 1)}')
    p(f'v_add_f32 {v(58)}, {v(58)}, {v(59)}')
    p(f'v_add_f32 {v(60)}, {v(60)}, {v(61)}')
    p(f'v_add_f32 {v(58)}, {v(58)}, {v(60)}')
    red8(58)
    vR = 62
    p(f'v_mul_f32 {v(58)}, {flit(1.0 / 640.0)}, {v(58)}')
    p(f'v_fma_f32 {v(58)}, -{v(vDel)}, {v(vDel)}, {v(58)}')
    p(f'v_max_f32 {v(58)}, 0, {v(58)}')
    p(f'v_cvt_pk_bf16_f32 {v(58)}, {v(58)}, {v(58)}')
    p(f'v_lshlrev_b32 {v(58)}, 16, {v(58)}')
    p(f'v_add_f32 {v(58)}, {flit(1e-5)}, {v(58)}')
    p(f'v_cvt_pk_bf16_f32 {v(58)}, {v(58)}, {v(58)}')
    p(f'v_lshlrev_b32 {v(58)}, 16, {v(58)}')
    p(f'v_sqrt_f32 {v(58)}, {v(58)}')
    p(f'v_cvt_pk_bf16_f32 {v(58)}, {v(58)}, {v(58)}')
    p(f'v_lshlrev_b32 {v(58)}, 16, {v(58)}')
    p(f'v_rcp_f32 {v(vR)}, {v(58)}')
    for i in range(40):
        t = TP[i % 4]
        p(f'v_lshlrev_b32 {v(t)}, 16, {v(RAW + i)}')
        p(f'v_and_b32 {v(t + 1)}, {v(vT0)}, {v(RAW + i)}')
        p(f'v_pk_mul_f32 {v(t, 2)}, {v(t, 2)}, {v(vR, 2)} op_sel_hi:[1,0]')
        p(f'v_cvt_pk_bf16_f32 {v(RAW + i)}, {v(t)}, {v(t + 1)}')
    vLe, vLo = 56, 57
    p(f'v_and_b32 {v(vT1)}, 15, {v(vA)}')
    p(f'v_xor_b32 {v(vT1)}, {v(vT1)}, {v(vP)}')
    p(f'v_mul_u32_u24 {v(vLe)}, 1280, {v(vA)}')
    p(f'v_lshl_add_u32 {v(vLe)}, {v(vT1)}, 4, {v(vLe)}')
    p(f'v_xor_b32 {v(vLo)}, 128, {v(vLe)}')
    for i in range(10):
        p(f'ds_write_b128 {v(vLe if i % 2 == 0 else vLo)}, {v(RAW + 4 * i, 4)} offset:{256 * (i >> 1)}')
    for j in range(5):
        if j < 4:
            p(f's_cmp_lg_u32 {s(sJ)}, {j}')
            p(f's_cbranch_scc1 K1_XN{j + 1}')
        for i in (2 * j, 2 * j + 1):
            p(f'buffer_store_dwordx4 {v(RAW + 4 * i, 4)}, {v(vOffX)}, {s(SRD_XN, 4)}, {s(sBoff)} offen offset:{128 * i}')
        if j < 4:
            p('s_branch K1_XNDONE')
            p.label(f'K1_XN{j + 1}')
    p.label('K1_XNDONE')
    vAB = 58
    p(f'v_and_b32 {v(vT1)}, 3, {v(vM)}')
    p(f'v_xor_b32 {v(vT1)}, {v(vT1)}, {v(vQ)}')
    p(f'v_lshrrev_b32 {v(vT2)}, 2, {v(vM)}')
    p(f'v_mul_u32_u24 {v(vT3)}, 1280, {v(vM)}')
    p(f'v_lshl_add_u32 {v(vT3)}, {v(vT1)}, 4, {v(vT3)}')
    for c in range(4):
        p(f'v_xor_b32 {v(vT1)}, {c}, {v(vT2)}')
        p(f'v_lshl_add_u32 {v(vAB + c)}, {v(vT1)}, 6, {v(vT3)}')
    p('s_waitcnt lgkmcnt(0)')
    p('s_barrier')
    ACC = 62
    ACC = 2
    Yr0, Yr1, Yi0, Yi1 = 62, 66, 12, 2

    def aread(kk, mt):
        slot = (kk % 5) * 2 + mt
        p(f'ds_read_b128 {v(RAW + 4 * slot, 4)}, {v(vAB + (kk & 3))} offset:{256 * (kk >> 2) + mt * 20480}')
    for kk in range(5):
        aread(kk, 0)
        aread(kk, 1)
    for kk in range(20):
        outstanding_after = min(5, 20 - kk) * 2 - 2
        p(f's_waitcnt lgkmcnt({outstanding_after})')
        a0, a1 = RAW + 4 * ((kk % 5) * 2), RAW + 4 * ((kk % 5) * 2 + 1)
        fc, fs = FR + 8 * kk, FR + 8 * kk + 4
        c = (lambda r: '0') if kk == 0 else (lambda r: v(r, 4))
        p(f'v_mfma_f32_16x16x32_bf16 {v(Yr0, 4)}, {v(a0, 4)}, {v(fc, 4)}, {c(Yr0)}')
        p(f'v_mfma_f32_16x16x32_bf16 {v(Yi0, 4)}, {v(a0, 4)}, {v(fs, 4)}, {c(Yi0)}')
        p(f'v_mfma_f32_16x16x32_bf16 {v(Yr1, 4)}, {v(a1, 4)}, {v(fc, 4)}, {c(Yr1)}')
        p(f'v_mfma_f32_16x16x32_bf16 {v(Yi1, 4)}, {v(a1, 4)}, {v(fs, 4)}, {c(Yi1)}')
        if kk + 5 < 20:
            aread(kk + 5, 0)
            aread(kk + 5, 1)
    TW = 96
    vQ4 = 16
    p(f'v_lshlrev_b32 {v(vQ4)}, 2, {v(vQ)}')
    p(f'v_cvt_f32_u32 {v(vQ4)}, {v(vQ4)}')
    p(f'v_cvt_f32_u32 {v(17)}, {s(sB)}')
    p(f'v_mul_f32 {v(17)}, {flit(-1.0 / 2048.0)}, {v(17)}')
    for r in range(8):
        mt, i = r >> 2, r & 3
        p(f'v_add_f32 {v(18)}, {flit(float(16 * mt + i))}, {v(vQ4)}')
        p(f'v_mul_f32 {v(18)}, {v(18)}, {v(17)}')
        p(f'v_cos_f32 {v(TW + 2 * r)}, {v(18)}')
        p(f'v_sin_f32 {v(TW + 2 * r + 1)}, {v(18)}')
    vOffT = 19
    p(f's_mov_b32 {s(sTmp)}, {4 * 81920}')
    p(f'v_mul_lo_u32 {v(vOffT)}, {v(vQ)}, {s(sTmp)}')
    p(f'v_lshl_add_u32 {v(vOffT)}, {v(vKd)}, 2, {v(vOffT)}')
    for r in range(8):
        mt, i = r >> 2, r & 3
        p(f's_add_u32 {s(sRow + r)}, {s(sBoff)}, {(16 * mt + i) * 81920}')
    Br, Bi = 20, 24
    p(f'v_cvt_pk_bf16_f32 {v(Br)}, {v(Yr0)}, {v(Yr0 + 1)}')
    p(f'v_cvt_pk_bf16_f32 {v(Br + 1)}, {v(Yr0 + 2)}, {v(Yr0 + 3)}')
    p(f'v_cvt_pk_bf16_f32 {v(Br + 2)}, {v(Yr1)}, {v(Yr1 + 1)}')
    p(f'v_cvt_pk_bf16_f32 {v(Br + 3)}, {v(Yr1 + 2)}, {v(Yr1 + 3)}')
    p(f'v_cvt_pk_bf16_f32 {v(Bi)}, {v(Yi0)}, {v(Yi0 + 1)}')
    p(f'v_cvt_pk_bf16_f32 {v(Bi + 1)}, {v(Yi0 + 2)}, {v(Yi0 + 3)}')
    p(f'v_cvt_pk_bf16_f32 {v(Bi + 2)}, {v(Yi1)}, {v(Yi1 + 1)}')
    p(f'v_cvt_pk_bf16_f32 {v(Bi + 3)}, {v(Yi1 + 2)}, {v(Yi1 + 3)}')
    Tr, Ti = 28, 36
    for mt in range(2):
        p(f'v_mfma_f32_16x16x32_bf16 {v(Tr + 4 * mt, 4)}, {v(E32 + 4 * mt, 4)}, {v(Br, 4)}, 0')
        p(f'v_mfma_f32_16x16x32_bf16 {v(Ti + 4 * mt, 4)}, {v(E32 + 4 * mt, 4)}, {v(Bi, 4)}, 0')
    for mt in range(2):
        p(f'v_mfma_f32_16x16x32_bf16 {v(Tr + 4 * mt, 4)}, {v(E32 + 8 + 4 * mt, 4)}, {v(Bi, 4)}, {v(Tr + 4 * mt, 4)}')
        p(f'v_mfma_f32_16x16x32_bf16 {v(Ti + 4 * mt, 4)}, {v(E32 + 16 + 4 * mt, 4)}, {v(Br, 4)}, {v(Ti + 4 * mt, 4)}')
    for r in range(8):
        c_, s_ = TW + 2 * r, TW + 2 * r + 1
        tr, ti = Tr + r, Ti + r
        o1, o2 = 44 + 2 * (r % 4), 45 + 2 * (r % 4)
        p(f'v_mul_f32 {v(o1)}, {v(tr)}, {v(c_)}')
        p(f'v_mul_f32 {v(o2)}, {v(tr)}, {v(s_)}')
        p(f'v_fma_f32 {v(o1)}, -{v(ti)}, {v(s_)}, {v(o1)}')
        p(f'v_fmac_f32 {v(o2)}, {v(ti)}, {v(c_)}')
        p(f'v_cvt_pk_bf16_f32 {v(TW + 16 + r)}, {v(o1)}, {v(o2)}')
        p(f'buffer_store_dword {v(TW + 16 + r)}, {v(vOffT)}, {s(SRD_T, 4)}, {s(sRow + r)} offen')
    p('s_endpgm')

    p.label('K1_GROLE', pad=4)
    sFr, sMt, sKk, sNs = 32, 33, 34, 35
    p(f's_sub_u32 {s(sFr)}, s2, {K1_MAIN}')
    p(f's_lshl_b32 {s(sFr)}, {s(sFr)}, 2')
    p(f's_add_u32 {s(sFr)}, {s(sFr)}, {s(sW)}')
    p(f's_mul_hi_u32 {s(sTmp)}, {s(sFr)}, 0x33333334')
    p(f's_mul_i32 {s(sTmp2)}, {s(sTmp)}, 5')
    p(f's_sub_u32 {s(sMt)}, {s(sFr)}, {s(sTmp2)}')
    p(f's_mul_hi_u32 {s(sNs)}, {s(sTmp)}, 0x0ccccccd')
    p(f's_mul_i32 {s(sTmp2)}, {s(sNs)}, 20')
    p(f's_sub_u32 {s(sKk)}, {s(sTmp)}, {s(sTmp2)}')
    p(f's_mul_i32 {s(sTmp)}, {s(sNs)}, 80')
    p(f's_lshl_b32 {s(sTmp2)}, {s(sMt)}, 4')
    p(f's_add_u32 {s(sTmp)}, {s(sTmp)}, {s(sTmp2)}')
    vD, vK0, vSgn = 6, 7, 8
    p(f'v_and_b32 {v(vD)}, 15, {v(vLane)}')
    p(f'v_add_u32 {v(vD)}, {s(sTmp)}, {v(vD)}')
    p(f'v_lshrrev_b32 {v(vK0)}, 4, {v(vLane)}')
    p(f'v_lshlrev_b32 {v(vK0)}, 2, {v(vK0)}')
    p(f's_lshl_b32 {s(sTmp)}, {s(sKk)}, 4')
    p(f'v_add_u32 {v(vK0)}, {s(sTmp)}, {v(vK0)}')
    NN = 2048.0 * 640.0
    p(f'v_lshlrev_b32 {v(vSgn)}, 31, {v(vD)}')
    p(f'v_or_b32 {v(vSgn)}, {flit(1.0 / NN)}, {v(vSgn)}')
    p(f'v_mov_b32 {v(9)}, {flit(1.0 / NN)}')
    for e in range(4):
        p(f'v_add_u32 {v(10)}, {e}, {v(vK0)}')
        p(f'v_mul_u32_u24 {v(11)}, {v(10)}, {v(vD)}')
        mod640_cs(p, 12, 11, vT0, vT1, False)
        p(f'v_mul_f32 {v(12)}, {flit(2.0 / NN)}, {v(12)}')
        p(f'v_mul_f32 {v(13)}, {flit(-2.0 / NN)}, {v(13)}')
        if e == 0:
            p(f'v_cmp_eq_u32 vcc, 0, {v(10)}')
            p(f'v_cndmask_b32 {v(12)}, {v(12)}, {v(9)}, vcc')
            p(f'v_cndmask_b32 {v(13)}, {v(13)}, {v(vSgn)}, vcc')
        p(f'v_cvt_pk_bf16_f32 {v(16 + e)}, {v(12)}, {v(13)}')
    p('s_waitcnt lgkmcnt(0)')
    srd(p, SRD_G, sWS, G_OFF, G_BYTES)
    p(f's_lshl_b32 {s(sTmp)}, {s(sFr)}, 10')
    p(f'v_lshlrev_b32 {v(vT0)}, 4, {v(vLane)}')
    p(f'buffer_store_dwordx4 {v(16, 4)}, {v(vT0)}, {s(SRD_G, 4)}, {s(sTmp)} offen')
    p.label('K1_END')
    p('s_endpgm')
    return dict(name=name, grid=K1_GRID, block=256, lds=40960, vgpr=256, sgpr=48)
```

```python
from asmlib import *
from common import *

NGEMM = 256
NFFT = 160
K2_GRID = NGEMM + NFFT + 1
STAGE = 20480
LOG2E = 1.4426950408889634
DPP_SWAP = 'quad_perm:[1,0,3,2] row_mask:0xf bank_mask:0xf'


def gen_k2(p):
    name = 'k2_kernel'
    p.raw(f'.globl {name}\n.p2align 8\n.type {name},@function\n{name}:')
    sWr, sWi, sW1, sW3, sWS = 4, 6, 8, 10, 12
    sW, sT0, sT1, sT2 = 14, 15, 44, 45
    p(f's_cmp_ge_u32 s2, {K2_GRID}')
    p('s_cbranch_scc1 K2_END')
    p(f's_load_dwordx4 {s(sWr, 4)}, s[0:1], 8')
    p(f's_load_dwordx4 {s(sW1, 4)}, s[0:1], 32')
    p(f's_load_dwordx2 {s(sWS, 2)}, s[0:1], 72')
    vLane, vT0, vT1, vT2, vT3 = 1, 2, 3, 4, 5
    p(f'v_lshrrev_b32 {v(vT0)}, 6, v0')
    p(f'v_and_b32 {v(vLane)}, 63, v0')
    p(f'v_readfirstlane_b32 {s(sW)}, {v(vT0)}')
    p(f's_cmp_ge_u32 s2, {NGEMM}')
    p('s_cbranch_scc1 K2_FFT')
    gen_gemm(p, locals())
    p.label('K2_FFT', pad=4)
    gen_fft(p, locals())
    p.label('K2_END')
    p('s_endpgm')
    return dict(name=name, grid=K2_GRID, block=256, lds=4 * STAGE, vgpr=256, sgpr=96)


def gen_gemm(p, L):
    sW1, sW3, sWS, sW, sT0, sT1, sT2 = (L[k] for k in ('sW1', 'sW3', 'sWS', 'sW', 'sT0', 'sT1', 'sT2'))
    vLane, vT0, vT1, vT2, vT3 = (L[k] for k in ('vLane', 'vT0', 'vT1', 'vT2', 'vT3'))
    SRD_XN, SRD_W, SRD_H = 16, 20, 24
    sMt, sFt, sKx, sKw, sM0x, sM0w, sCnt = 28, 29, 30, 31, 32, 33, 34
    p(f's_and_b32 {s(sT0)}, s2, 7')
    p(f's_lshr_b32 {s(sT1)}, s2, 3')
    p(f's_and_b32 {s(sMt)}, {s(sT0)}, 1')
    p(f's_lshl_b32 {s(sMt)}, {s(sMt)}, 3')
    p(f's_and_b32 {s(sT2)}, {s(sT1)}, 7')
    p(f's_add_u32 {s(sMt)}, {s(sMt)}, {s(sT2)}')
    p(f's_lshr_b32 {s(sFt)}, {s(sT0)}, 1')
    p(f's_lshl_b32 {s(sFt)}, {s(sFt)}, 2')
    p(f's_lshr_b32 {s(sT2)}, {s(sT1)}, 3')
    p(f's_add_u32 {s(sFt)}, {s(sFt)}, {s(sT2)}')
    vDX = 6
    vDW = 8
    p(f'v_lshrrev_b32 {v(vT0)}, 4, {v(vLane)}')
    p(f'v_sub_u32 {v(vT0)}, 0, {v(vT0)}')
    p(f'v_xor_b32 {v(vT0)}, {v(vT0)}, {v(vLane)}')
    p(f'v_and_b32 {v(vT0)}, 3, {v(vT0)}')
    p(f'v_lshrrev_b32 {v(vT1)}, 2, {v(vLane)}')
    p(f's_lshl_b32 {s(sT0)}, {s(sMt)}, 7')
    p(f's_lshl_b32 {s(sT1)}, {s(sW)}, 5')
    p(f's_add_u32 {s(sT0)}, {s(sT0)}, {s(sT1)}')
    p(f'v_add_u32 {v(vT1)}, {s(sT0)}, {v(vT1)}')
    p(f'v_mul_u32_u24 {v(vT1)}, 1280, {v(vT1)}')
    p(f'v_lshl_add_u32 {v(vDX)}, {v(vT0)}, 4, {v(vT1)}')
    p(f'v_add_u32 {v(vDX + 1)}, {16 * 1280 - 1024}, {v(vDX)}')
    p(f's_and_b32 {s(sT0)}, {s(sW)}, 1')
    p(f's_mul_i32 {s(sT0)}, {s(sT0)}, 192')
    p(f's_mul_i32 {s(sT1)}, {s(sFt)}, 192')
    for i in range(3):
        p(f'v_add_u32 {v(vT0)}, {s(sT0)}, {v(vLane)}')
        if i:
            p(f'v_add_u32 {v(vT0)}, {64 * i}, {v(vT0)}')
        p(f'v_mul_u32_u24 {v(vT1)}, 43691, {v(vT0)}')
        p(f'v_lshrrev_b32 {v(vT1)}, 19, {v(vT1)}')
        p(f'v_mul_u32_u24 {v(vT2)}, 12, {v(vT1)}')
        p(f'v_sub_u32 {v(vT0)}, {v(vT0)}, {v(vT2)}')
        p(f'v_bfe_u32 {v(vT2)}, {v(vT1)}, 2, 1')
        p(f'v_lshlrev_b32 {v(vT2)}, 1, {v(vT2)}')
        p(f'v_xor_b32 {v(vT0)}, {v(vT0)}, {v(vT2)}')
        p(f'v_bfe_u32 {v(vT2)}, {v(vT1)}, 2, 2')
        p(f'v_lshlrev_b32 {v(vT2)}, 3, {v(vT2)}')
        p(f'v_and_b32 {v(vT3)}, 3, {v(vT1)}')
        p(f'v_add_u32 {v(vT2)}, {v(vT2)}, {v(vT3)}')
        p(f'v_lshrrev_b32 {v(vT3)}, 4, {v(vT1)}')
        p(f'v_lshl_add_u32 {v(vT2)}, {v(vT3)}, 2, {v(vT2)}')
        p(f'v_mul_u32_u24 {v(vT2)}, 3072, {v(vT2)}')
        p(f'v_lshl_add_u32 {v(vT2)}, {v(vT0)}, 4, {v(vT2)}')
        p(f'v_add_u32 {v(vDW + i)}, {s(sT1)}, {v(vT2)}')
        if i:
            p(f'v_subrev_u32 {v(vDW + i)}, {1024 * i}, {v(vDW + i)}')
    p(f's_lshl_b32 {s(sM0x)}, {s(sW)}, 11')
    p(f's_lshr_b32 {s(sT0)}, {s(sW)}, 1')
    p(f's_mul_i32 {s(sT0)}, {s(sT0)}, 6144')
    p(f's_and_b32 {s(sT1)}, {s(sW)}, 1')
    p(f's_mul_i32 {s(sT1)}, {s(sT1)}, 3072')
    p(f's_add_u32 {s(sM0w)}, {s(sT0)}, {s(sT1)}')
    p(f's_add_u32 {s(sM0w)}, {s(sM0w)}, 8192')
    p('s_waitcnt lgkmcnt(0)')
    srd(p, SRD_XN, sWS, XN_OFF, XN_BYTES)
    srd(p, SRD_H, sWS, H_OFF, H_BYTES)
    p(f's_cmp_ge_u32 {s(sW)}, 2')
    p(f's_cselect_b32 {s(SRD_W)}, {s(sW3)}, {s(sW1)}')
    p(f's_cselect_b32 {s(SRD_W + 1)}, {s(sW3 + 1)}, {s(sW1 + 1)}')
    p(f's_mov_b32 {s(SRD_W + 2)}, {W13_BYTES}')
    p(f's_mov_b32 {s(SRD_W + 3)}, 0x00020000')
    p(f's_mov_b32 {s(sKx)}, 0')
    p(f's_mov_b32 {s(sKw)}, 0')

    def dma(stage):
        out = [f's_add_u32 m0, {s(sM0x)}, {stage * STAGE}']
        for i in range(2):
            out.append(f'buffer_load_dwordx4 {v(vDX + i)}, {s(SRD_XN, 4)}, {s(sKx)} offen offset:{1024 * i} lds')
        out.append(f's_add_u32 m0, {s(sM0w)}, {stage * STAGE}')
        for i in range(3):
            out.append(f'buffer_load_dwordx4 {v(vDW + i)}, {s(SRD_W, 4)}, {s(sKw)} offen offset:{1024 * i} lds')
        out.append(f's_add_u32 {s(sKx)}, {s(sKx)}, 64')
        out.append(f's_add_u32 {s(sKw)}, {s(sKw)}, {32 * 3072}')
        return out

    for st in range(4):
        for ins in dma(st):
            p(ins)
    vN, vQ = 11, 12
    vBA = 13
    vAA = 14
    sWm, sWn = 35, 36
    p(f's_and_b32 {s(sWm)}, {s(sW)}, 1')
    p(f's_lshr_b32 {s(sWn)}, {s(sW)}, 1')
    p(f'v_and_b32 {v(vN)}, 15, {v(vLane)}')
    p(f'v_lshrrev_b32 {v(vQ)}, 4, {v(vLane)}')
    p(f'v_lshrrev_b32 {v(vT0)}, 2, {v(vN)}')
    p(f'v_sub_u32 {v(vT0)}, 0, {v(vT0)}')
    p(f'v_xor_b32 {v(vT0)}, {v(vT0)}, {v(vQ)}')
    p(f'v_and_b32 {v(vT0)}, 3, {v(vT0)}')
    p(f'v_lshlrev_b32 {v(vT0)}, 4, {v(vT0)}')
    p(f's_lshl_b32 {s(sT0)}, {s(sWm)}, 12')
    p(f'v_lshl_add_u32 {v(vT0)}, {v(vN)}, 6, {v(vT0)}')
    p(f'v_add_u32 {v(vBA)}, {s(sT0)}, {v(vT0)}')
    p(f'v_lshrrev_b32 {v(vT0)}, 2, {v(vN)}')
    p(f'v_lshl_add_u32 {v(vT0)}, {v(vQ)}, 2, {v(vT0)}')
    p(f'v_mul_u32_u24 {v(vT0)}, 192, {v(vT0)}')
    p(f'v_and_b32 {v(vT1)}, 3, {v(vN)}')
    p(f'v_lshl_add_u32 {v(vT0)}, {v(vT1)}, 3, {v(vT0)}')
    p(f'v_add_u32 {v(vT0)}, 8192, {v(vT0)}')
    p(f'v_and_b32 {v(vT1)}, 1, {v(vQ)}')
    p(f's_mul_i32 {s(sT0)}, {s(sWn)}, 3')
    for e in range(3):
        p(f's_add_u32 {s(sT1)}, {s(sT0)}, {e}')
        p(f'v_xor_b32 {v(vT2)}, {s(sT1)}, {v(vT1)}')
        p(f'v_lshl_add_u32 {v(vAA + e)}, {v(vT2)}, 5, {v(vT0)}')
        p(f'v_add_u32 {v(vAA + 3 + e)}, {2 * STAGE}, {v(vAA + e)}')

    FA = [64, 104]
    FB = [88, 128]
    ACC = 160

    def reads(step):
        st, fs = step % 4, step % 2
        out = []
        for img in range(2):
            for e in range(3):
                a = vAA + (3 if st >= 2 else 0) + e
                off = (st % 2) * STAGE + img * 6144
                d = FA[fs] + (img * 3 + e) * 4
                out.append(f'ds_read_b64_tr_b16 {v(d, 2)}, {v(a)} offset:{off}')
                out.append(f'ds_read_b64_tr_b16 {v(d + 2, 2)}, {v(a)} offset:{off + 3072}')
        bl = []
        for nt in range(4):
            bl.append(f'ds_read_b128 {v(FB[fs] + 4 * nt, 4)}, {v(vBA)} offset:{st * STAGE + nt * 1024}')
        return bl[:2] + out[:4] + bl[2:] + out[4:]

    def mfmas(step, first):
        fs = step % 2
        out = []
        for nt in range(4):
            for ie in range(6):
                acc = ACC + (ie * 4 + nt) * 4
                c = '0' if first else v(acc, 4)
                out.append(f'v_mfma_f32_16x16x32_bf16 {v(acc, 4)}, {v(FA[fs] + 4 * ie, 4)}, {v(FB[fs] + 4 * nt, 4)}, {c}')
        return out

    def interleave(m, others):
        res = []
        oi = 0
        for k, ins in enumerate(m):
            res.append(ins)
            if oi < len(others):
                res.append(others[oi])
                oi += 1
        res += others[oi:]
        return res

    p('s_waitcnt vmcnt(15)')
    p('s_barrier')
    for ins in reads(0):
        p(ins)
    p('s_waitcnt lgkmcnt(0)')

    def step(k, slot, first, do_dma, vm, has_next):
        if has_next:
            p(f's_waitcnt vmcnt({vm})')
            p('s_barrier')
        others = []
        if has_next:
            others += reads(k + 1)
        if do_dma:
            others += dma(slot)
        for ins in interleave(mfmas(k, first), others):
            p(ins)
        if has_next:
            p('s_waitcnt lgkmcnt(0)')

    for k in range(4):
        step(k, k, k == 0, True, 10, True)
    p(f's_mov_b32 {s(sCnt)}, 3')
    p.loop_begin('K2_GLOOP')
    for k in range(4, 8):
        step(k, k % 4, False, True, 10, True)
    p(f's_sub_u32 {s(sCnt)}, {s(sCnt)}, 1')
    p(f's_cmp_lg_u32 {s(sCnt)}, 0')
    p('s_cbranch_scc1 K2_GLOOP')
    p.loop_end()
    step(16, 0, False, False, 10, True)
    step(17, 1, False, False, 5, True)
    step(18, 2, False, False, 0, True)
    step(19, 3, False, False, 0, False)

    vOff = 20
    p(f's_lshl_b32 {s(sT0)}, {s(sMt)}, 7')
    p(f's_lshl_b32 {s(sT1)}, {s(sWm)}, 6')
    p(f's_add_u32 {s(sT0)}, {s(sT0)}, {s(sT1)}')
    p(f'v_add_u32 {v(vT0)}, {s(sT0)}, {v(vN)}')
    p(f'v_mul_u32_u24 {v(vT0)}, 3072, {v(vT0)}')
    p(f's_mul_i32 {s(sT0)}, {s(sFt)}, 192')
    p(f's_mul_i32 {s(sT1)}, {s(sWn)}, 96')
    p(f's_add_u32 {s(sT0)}, {s(sT0)}, {s(sT1)}')
    p(f'v_lshl_add_u32 {v(vT0)}, {v(vQ)}, 3, {v(vT0)}')
    p(f'v_add_u32 {v(vOff)}, {s(sT0)}, {v(vT0)}')
    vMask, vL2, vOne = 21, 22, 24
    p(f'v_mov_b32 {v(vMask)}, 0xffff0000')
    p(f'v_mov_b32 {v(vL2)}, {flit(-LOG2E)}')
    p(f'v_mov_b32 {v(vOne)}, 1.0')
    for nt in range(4):
        p(f's_mov_b32 {s(40 + nt)}, {nt * 16 * 3072}')
    tb = 64
    cnt = 0
    for nt in range(4):
        for e in range(3):
            g = ACC + (e * 4 + nt) * 4
            u = ACC + ((3 + e) * 4 + nt) * 4
            o = tb + 16 * (cnt % 4) + 12
            for hh in range(2):
                t = tb + 16 * (cnt % 4) + 6 * hh
                G, E = t, t + 2
                p(f'v_cvt_pk_bf16_f32 {v(t + 4)}, {v(g + 2 * hh)}, {v(g + 2 * hh + 1)}')
                p(f'v_cvt_pk_bf16_f32 {v(t + 5)}, {v(u + 2 * hh)}, {v(u + 2 * hh + 1)}')
                p(f'v_lshlrev_b32 {v(G)}, 16, {v(t + 4)}')
                p(f'v_and_b32 {v(G + 1)}, {v(vMask)}, {v(t + 4)}')
                p(f'v_pk_mul_f32 {v(E, 2)}, {v(G, 2)}, {v(vL2, 2)} op_sel_hi:[1,0]')
                p(f'v_exp_f32 {v(E)}, {v(E)}')
                p(f'v_exp_f32 {v(E + 1)}, {v(E + 1)}')
                p(f'v_pk_add_f32 {v(E, 2)}, {v(E, 2)}, {v(vOne, 2)} op_sel_hi:[1,0]')
                p(f'v_rcp_f32 {v(E)}, {v(E)}')
                p(f'v_rcp_f32 {v(E + 1)}, {v(E + 1)}')
                p(f'v_pk_mul_f32 {v(G, 2)}, {v(G, 2)}, {v(E, 2)}')
                p(f'v_cvt_pk_bf16_f32 {v(t + 4)}, {v(G)}, {v(G + 1)}')
                p(f'v_lshlrev_b32 {v(G)}, 16, {v(t + 4)}')
                p(f'v_and_b32 {v(G + 1)}, {v(vMask)}, {v(t + 4)}')
                p(f'v_lshlrev_b32 {v(E)}, 16, {v(t + 5)}')
                p(f'v_and_b32 {v(E + 1)}, {v(vMask)}, {v(t + 5)}')
                p(f'v_pk_mul_f32 {v(G, 2)}, {v(G, 2)}, {v(E, 2)}')
                p(f'v_cvt_pk_bf16_f32 {v(o + hh)}, {v(G)}, {v(G + 1)}')
            p(f'buffer_store_dwordx2 {v(o, 2)}, {v(vOff)}, {s(SRD_H, 4)}, {s(40 + nt)} offen offset:{32 * e}')
            cnt += 1
    p('s_endpgm')


def gen_fft(p, L):
    sWr, sWi, sWS, sW, sT0, sT1, sT2 = (L[k] for k in ('sWr', 'sWi', 'sWS', 'sW', 'sT0', 'sT1', 'sT2'))
    vLane, vT0, vT1, vT2, vT3 = (L[k] for k in ('vLane', 'vT0', 'vT1', 'vT2', 'vT3'))
    SRD_T, SRD_U, SRD_WR, SRD_WI = 16, 20, 24, 28
    sTB = 32
    sG, sKa, sCt, sSpec, sOff, sLds = 34, 35, 36, 37, 38, 39
    EC, ES = 128, 160
    B, Bp = 32, 48
    X, U = 64, 96
    WR, WI = 192, 224
    vN, vH, vKaF, vWoff, vUoff, vTr, vMo, vMe, vKa = 6, 7, 8, 9, 10, 11, 12, 13, 14
    p(f's_getpc_b64 {s(sTB, 2)}')
    p(f's_add_u32 {s(sTB)}, {s(sTB)}, TBL_E64@rel32@lo+4')
    p(f's_addc_u32 {s(sTB + 1)}, {s(sTB + 1)}, TBL_E64@rel32@hi+12')
    p(f's_sub_u32 {s(sG)}, s2, {NGEMM}')
    p(f's_cmp_eq_u32 {s(sG)}, {NFFT}')
    p(f's_cselect_b32 {s(sSpec)}, 1, 0')
    p(f'v_and_b32 {v(vN)}, 31, {v(vLane)}')
    p(f'v_mov_b32 {v(vUoff)}, 0')
    p(f'v_mov_b32 {v(vWoff)}, 0')
    p(f'v_lshrrev_b32 {v(vH)}, 5, {v(vLane)}')
    p(f's_lshl_b32 {s(sLds)}, {s(sW)}, 12')
    p('s_waitcnt lgkmcnt(0)')
    srd(p, SRD_T, sWS, T_OFF, T_BYTES)
    srd(p, SRD_U, sWS, U_OFF, U_BYTES)
    srd(p, SRD_WR, sWr, 0, W_BYTES)
    srd(p, SRD_WI, sWi, 0, W_BYTES)
    p(f'v_and_b32 {v(vT0)}, 1, {v(vLane)}')
    p(f'v_mov_b32 {v(vT1)}, 0x80008000')
    p(f'v_mul_lo_u32 {v(vMo)}, {v(vT0)}, {v(vT1)}')
    p(f'v_xor_b32 {v(vMe)}, {v(vMo)}, {v(vT1)}')
    p(f's_cmp_eq_u32 {s(sSpec)}, 1')
    p('s_cbranch_scc1 K2_SPEC_LOAD')
    p(f's_and_b32 {s(sKa)}, {s(sG)}, 31')
    p(f's_lshr_b32 {s(sCt)}, {s(sG)}, 5')
    p(f's_lshl_b32 {s(sCt)}, {s(sCt)}, 2')
    p(f's_add_u32 {s(sCt)}, {s(sCt)}, {s(sW)}')
    p(f'v_mov_b32 {v(vKa)}, {s(sKa)}')
    p(f'v_lshrrev_b32 {v(vT0)}, 2, {v(vLane)}')
    p(f'v_mul_u32_u24 {v(vT0)}, 1280, {v(vT0)}')
    p(f'v_and_b32 {v(vT1)}, 3, {v(vLane)}')
    p(f'v_lshl_add_u32 {v(vT0)}, {v(vT1)}, 4, {v(vT0)}')
    p(f's_mul_i32 {s(sT0)}, {s(sKa)}, 81920')
    p(f's_lshl_b32 {s(sT1)}, {s(sCt)}, 6')
    p(f's_add_u32 {s(sT0)}, {s(sT0)}, {s(sT1)}')
    p(f's_mov_b32 m0, {s(sLds)}')
    for i in range(4):
        if i:
            p(f's_add_u32 {s(sT0)}, {s(sT0)}, {16 * 1280 - 1024}')
        p(f'buffer_load_dwordx4 {v(vT0)}, {s(SRD_T, 4)}, {s(sT0)} offen offset:{1024 * i} lds')
    p(f'v_lshlrev_b32 {v(vT0)}, 7, {v(vH)}')
    p(f'v_add_u32 {v(vT0)}, {s(sKa)}, {v(vT0)}')
    p(f'v_mul_u32_u24 {v(vWoff)}, 642, {v(vT0)}')
    p(f'v_and_b32 {v(vT1)}, 30, {v(vN)}')
    p(f's_lshl_b32 {s(sT1)}, {s(sCt)}, 5')
    p(f'v_add3_u32 {v(vWoff)}, {v(vWoff)}, {v(vT1)}, {s(sT1)}')
    p(f'v_mul_u32_u24 {v(vUoff)}, 1280, {v(vT0)}')
    p(f'v_lshl_add_u32 {v(vUoff)}, {v(vN)}, 1, {v(vUoff)}')
    p(f's_lshl_b32 {s(sT1)}, {s(sCt)}, 6')
    p(f'v_add_u32 {v(vUoff)}, {s(sT1)}, {v(vUoff)}')
    p('s_branch K2_LOADED')
    p.label('K2_SPEC_LOAD', pad=4)
    p(f's_cmp_ge_u32 {s(sW)}, 2')
    p('s_cbranch_scc1 K2_SPEC_EW')
    p(f's_lshl_b32 {s(sT1)}, {s(sW)}, 4')
    p(f'v_lshrrev_b32 {v(vKa)}, 1, {v(vN)}')
    p(f'v_add_u32 {v(vKa)}, {s(sT1)}, {v(vKa)}')
    p(f'v_and_b32 {v(vT0)}, 15, {v(vLane)}')
    p(f'v_add_u32 {v(vT0)}, {s(sT1)}, {v(vT0)}')
    p(f'v_lshlrev_b32 {v(vT0)}, 6, {v(vT0)}')
    p(f'v_lshrrev_b32 {v(vT1)}, 4, {v(vLane)}')
    p(f'v_add_u32 {v(vT0)}, {v(vT0)}, {v(vT1)}')
    p(f'v_mul_u32_u24 {v(vT0)}, 1280, {v(vT0)}')
    p(f's_mov_b32 m0, {s(sLds)}')
    p(f's_mov_b32 {s(sT0)}, 0')
    for i in range(16):
        if i:
            p(f's_add_u32 {s(sT0)}, {s(sT0)}, {4 * 1280 - 256}')
        p(f'buffer_load_dword {v(vT0)}, {s(SRD_T, 4)}, {s(sT0)} offen offset:{256 * i} lds')
    p(f'v_lshlrev_b32 {v(vT0)}, 7, {v(vH)}')
    p(f'v_add_u32 {v(vT0)}, {v(vKa)}, {v(vT0)}')
    p(f'v_mul_u32_u24 {v(vUoff)}, 1280, {v(vT0)}')
    p(f'v_and_b32 {v(vT1)}, 1, {v(vN)}')
    p(f'v_lshl_add_u32 {v(vUoff)}, {v(vT1)}, 1, {v(vUoff)}')
    p(f'v_lshlrev_b32 {v(vWoff)}, 3, {v(vT0)}')
    p(f'v_lshl_add_u32 {v(vWoff)}, {v(vT1)}, 2, {v(vWoff)}')
    p.label('K2_LOADED', pad=4)
    p(f'v_lshlrev_b32 {v(vT0)}, 4, {v(vLane)}')
    for g4 in range(4):
        if g4:
            p(f'v_add_u32 {v(vT0)}, 4096, {v(vT0)}')
        for f in range(4):
            p(f'global_load_dwordx4 {v(EC + (g4 * 4 + f) * 4, 4)}, {v(vT0)}, {s(sTB, 2)} offset:{1024 * f}')

    def wloads(mt):
        for r in range(16):
            row = 32 * mt + 8 * (r >> 2) + (r & 3)
            p(f's_mov_b32 {s(sOff)}, {row * 32 * 642}')
            p(f'buffer_load_short_d16_hi {v(WR + 16 * mt + r)}, {v(vWoff)}, {s(SRD_WR, 4)}, {s(sOff)} offen')
            p(f'buffer_load_ushort {v(WI + 16 * mt + r)}, {v(vWoff)}, {s(SRD_WI, 4)}, {s(sOff)} offen')
    for r in range(32):
        p(f'v_mov_b32 {v(WR + r)}, 0')
    p(f'v_bfe_u32 {v(vT0)}, {v(vLane)}, 2, 2')
    p(f'v_lshl_add_u32 {v(vT0)}, {v(vH)}, 2, {v(vT0)}')
    p(f'v_lshlrev_b32 {v(vT0)}, 6, {v(vT0)}')
    p(f'v_bfe_u32 {v(vT1)}, {v(vLane)}, 4, 1')
    p(f'v_lshl_add_u32 {v(vT0)}, {v(vT1)}, 5, {v(vT0)}')
    p(f'v_and_b32 {v(vT1)}, 3, {v(vLane)}')
    p(f'v_lshl_add_u32 {v(vT0)}, {v(vT1)}, 3, {v(vT0)}')
    p(f'v_add_u32 {v(vTr)}, {s(sLds)}, {v(vT0)}')
    p(f's_cmp_eq_u32 {s(sSpec)}, 1')
    p('s_cbranch_scc1 K2_NOW1')
    wloads(0)
    p('s_waitcnt vmcnt(32)')
    p('s_branch K2_W1DONE')
    p.label('K2_NOW1')
    p('s_waitcnt vmcnt(0)')
    p.label('K2_W1DONE')
    for kk in range(4):
        p(f'ds_read_b64_tr_b16 {v(B + 4 * kk, 2)}, {v(vTr)} offset:{1024 * kk}')
        p(f'ds_read_b64_tr_b16 {v(B + 4 * kk + 2, 2)}, {v(vTr)} offset:{1024 * kk + 512}')
    p(f's_cmp_eq_u32 {s(sSpec)}, 1')
    p('s_cbranch_scc1 K2_NOW2')
    wloads(1)
    p.label('K2_NOW2')
    p('s_waitcnt lgkmcnt(0)')
    for r in range(16):
        p(f'v_xor_b32_dpp {v(Bp + r)}, {v(B + r)}, {v(vMo)} {DPP_SWAP}')

    def dft(acc):
        for kk in range(4):
            for mt in range(2):
                c = '0' if kk == 0 else v(acc + 16 * mt, 16)
                p(f'v_mfma_f32_32x32x16_bf16 {v(acc + 16 * mt, 16)}, {v(EC + (mt * 4 + kk) * 4, 4)}, {v(B + 4 * kk, 4)}, {c}')
        for kk in range(4):
            for mt in range(2):
                p(f'v_mfma_f32_32x32x16_bf16 {v(acc + 16 * mt, 16)}, {v(ES + (mt * 4 + kk) * 4, 4)}, {v(Bp + 4 * kk, 4)}, {v(acc + 16 * mt, 16)}')
    dft(X)
    p(f's_cmp_eq_u32 {s(sSpec)}, 1')
    p('s_cbranch_scc1 K2_SPEC_MUL')
    vSg = 15
    p(f'v_and_b32 {v(vSg)}, 0x80000000, {v(vMe)}')
    for mt in range(2):
        p(f's_waitcnt vmcnt({32 if mt == 0 else 0})')
        for r in range(16):
            i = 16 * mt + r
            p(f'v_lshl_add_u32 {v(WI + i)}, {v(WI + i)}, 16, {v(vSg)}')
        for r in range(16):
            i = 16 * mt + r
            p(f'v_mul_f32 {v(U + i)}, {v(X + i)}, {v(WR + i)}')
        for r in range(16):
            i = 16 * mt + r
            p(f'v_fmac_f32_dpp {v(U + i)}, {v(X + i)}, {v(WI + i)} {DPP_SWAP}')
    p('s_branch K2_MULDONE')
    p.label('K2_SPEC_MUL', pad=12)
    XS, VS = 16384, 32768
    for i in range(32):
        mt, r = i >> 4, i & 15
        p(f'ds_write_b32 {v(vWoff)}, {v(X + i)} offset:{XS + (32 * mt + 8 * (r >> 2) + (r & 3)) * 256}')
    p.label('K2_SPEC_EW', pad=4)
    p('s_waitcnt lgkmcnt(0)')
    p('s_barrier')
    vKs, vKn, vA1, vA2 = 16, 17, 18, 19
    WL = WR
    p(f'v_sub_u32 {v(vKn)}, 0, v0')
    for half in range(2):
        for i in range(4 * half, 4 * half + 4):
            p(f'v_add_u32 {v(vKs)}, {256 * i}, v0')
            p(f'v_subrev_u32 {v(vT0)}, {256 * i}, {v(vKn)}')
            p(f'v_and_b32 {v(vT0)}, 2047, {v(vT0)}')
            p(f'v_mul_u32_u24 {v(vA1)}, 642, {v(vKs)}')
            p(f'v_mul_u32_u24 {v(vA2)}, 642, {v(vT0)}')
            b = WL + 8 * i
            p(f'buffer_load_ushort {v(b + 0)}, {v(vA1)}, {s(SRD_WR, 4)}, 0 offen')
            p(f'buffer_load_ushort {v(b + 1)}, {v(vA1)}, {s(SRD_WI, 4)}, 0 offen')
            p(f'buffer_load_ushort {v(b + 2)}, {v(vA2)}, {s(SRD_WR, 4)}, 0 offen')
            p(f'buffer_load_ushort {v(b + 3)}, {v(vA2)}, {s(SRD_WI, 4)}, 0 offen')
            p(f'buffer_load_ushort {v(b + 4)}, {v(vA1)}, {s(SRD_WR, 4)}, 0 offen offset:640')
            p(f'buffer_load_ushort {v(b + 5)}, {v(vA1)}, {s(SRD_WI, 4)}, 0 offen offset:640')
            p(f'buffer_load_ushort {v(b + 6)}, {v(vA2)}, {s(SRD_WR, 4)}, 0 offen offset:640')
            p(f'buffer_load_ushort {v(b + 7)}, {v(vA2)}, {s(SRD_WI, 4)}, 0 offen offset:640')
            p(f'v_lshlrev_b32 {v(vKs)}, 3, {v(vKs)}')
            p(f'v_lshlrev_b32 {v(vT0)}, 3, {v(vT0)}')
            p(f'ds_read_b64 {v(U + 4 * i, 2)}, {v(vKs)} offset:{XS}')
            p(f'ds_read_b64 {v(U + 4 * i + 2, 2)}, {v(vT0)} offset:{XS}')
        p('s_waitcnt vmcnt(0) lgkmcnt(0)')
    for i in range(8):
        b = WL + 8 * i
        for e in range(8):
            p(f'v_lshlrev_b32 {v(b + e)}, 16, {v(b + e)}')
        p(f'v_add_f32 {v(b + 0)}, {v(b + 0)}, {v(b + 2)}')
        p(f'v_sub_f32 {v(b + 1)}, {v(b + 1)}, {v(b + 3)}')
        p(f'v_add_f32 {v(b + 4)}, {v(b + 4)}, {v(b + 6)}')
        p(f'v_sub_f32 {v(b + 5)}, {v(b + 5)}, {v(b + 7)}')
        p(f'v_add_f32 {v(b + 2)}, {v(b + 0)}, {v(b + 4)}')
        p(f'v_add_f32 {v(b + 3)}, {v(b + 1)}, {v(b + 5)}')
        p(f'v_sub_f32 {v(b + 6)}, {v(b + 0)}, {v(b + 4)}')
        p(f'v_sub_f32 {v(b + 7)}, {v(b + 1)}, {v(b + 5)}')
        xr, xi, pr, pi_ = U + 4 * i, U + 4 * i + 1, U + 4 * i + 2, U + 4 * i + 3
        p(f'v_mul_f32 {v(b + 0)}, {v(xr)}, {v(b + 2)}')
        p(f'v_fma_f32 {v(b + 0)}, -{v(xi)}, {v(b + 3)}, {v(b + 0)}')
        p(f'v_fmac_f32 {v(b + 0)}, {v(pr)}, {v(b + 6)}')
        p(f'v_fmac_f32 {v(b + 0)}, {v(pi_)}, {v(b + 7)}')
        p(f'v_mul_f32 {v(b + 1)}, {v(xr)}, {v(b + 3)}')
        p(f'v_fmac_f32 {v(b + 1)}, {v(xi)}, {v(b + 2)}')
        p(f'v_fmac_f32 {v(b + 1)}, {v(pr)}, {v(b + 7)}')
        p(f'v_fma_f32 {v(b + 1)}, -{v(pi_)}, {v(b + 6)}, {v(b + 1)}')
        p(f'v_mul_f32 {v(b + 0)}, 0.25, {v(b + 0)}')
        p(f'v_mul_f32 {v(b + 1)}, 0.25, {v(b + 1)}')
        p(f'v_lshlrev_b32 {v(vKs)}, 3, v0')
        p(f'ds_write_b64 {v(vKs)}, {v(b, 2)} offset:{VS + 2048 * i}')
    p('s_waitcnt lgkmcnt(0)')
    p('s_barrier')
    p(f's_cmp_ge_u32 {s(sW)}, 2')
    p('s_cbranch_scc1 K2_END')
    for i in range(32):
        mt, r = i >> 4, i & 15
        p(f'ds_read_b32 {v(U + i)}, {v(vWoff)} offset:{VS + (32 * mt + 8 * (r >> 2) + (r & 3)) * 256}')
    p('s_waitcnt lgkmcnt(0)')
    p.label('K2_MULDONE', pad=4)
    for r in range(16):
        p(f'v_cvt_pk_bf16_f32 {v(B + r)}, {v(U + 2 * r)}, {v(U + 2 * r + 1)}')
    for r in range(16):
        p(f'v_xor_b32_dpp {v(Bp + r)}, {v(B + r)}, {v(vMe)} {DPP_SWAP}')
    dft(X)
    vBase, vHB = 16, 17
    p(f'v_cvt_f32_u32 {v(vBase)}, {v(vKa)}')
    p(f'v_mul_f32 {v(vBase)}, {flit(1.0 / 2048.0)}, {v(vBase)}')
    p(f'v_and_b32 {v(vT0)}, 0x80000000, {v(vMe)}')
    p(f'v_xor_b32 {v(vBase)}, {v(vBase)}, {v(vT0)}')
    p(f'v_lshlrev_b32 {v(vT0)}, 2, {v(vH)}')
    p(f'v_cvt_f32_u32 {v(vT0)}, {v(vT0)}')
    p(f'v_mul_f32 {v(vHB)}, {v(vT0)}, {v(vBase)}')
    for i in range(32):
        mt, r = i >> 4, i & 15
        row = 32 * mt + 8 * (r >> 2) + (r & 3)
        p(f'v_fmamk_f32 {v(WI + i)}, {v(vBase)}, {flit(float(row))}, {v(vHB)}')
        p(f'v_cos_f32 {v(WR + i)}, {v(WI + i)}')
        p(f'v_sin_f32 {v(WI + i)}, {v(WI + i)}')
    for i in range(32):
        p(f'v_mul_f32 {v(U + i)}, {v(X + i)}, {v(WR + i)}')
    for i in range(32):
        p(f'v_fmac_f32_dpp {v(U + i)}, {v(X + i)}, {v(WI + i)} {DPP_SWAP}')
    for r in range(16):
        p(f'v_cvt_pk_bf16_f32 {v(B + r)}, {v(U + 2 * r)}, {v(U + 2 * r + 1)}')
    p(f's_cmp_eq_u32 {s(sSpec)}, 1')
    p('s_cbranch_scc1 K2_STORE')
    p(f's_cmp_lg_u32 {s(sCt)}, 0')
    p('s_cbranch_scc1 K2_STORE')
    p(f'v_cmp_le_u32 vcc, 2, {v(vN)}')
    p('s_and_b64 exec, exec, vcc')
    p.label('K2_STORE', pad=2)
    for i in range(32):
        mt, r = i >> 4, i & 15
        row = 32 * mt + 8 * (r >> 2) + (r & 3)
        p(f's_mov_b32 {s(sOff)}, {row * 40960}')
        if i % 2 == 0:
            p(f'buffer_store_short {v(B + i // 2)}, {v(vUoff)}, {s(SRD_U, 4)}, {s(sOff)} offen')
        else:
            p(f'buffer_store_short_d16_hi {v(B + i // 2)}, {v(vUoff)}, {s(SRD_U, 4)}, {s(sOff)} offen')
    p('s_endpgm')
```

```python
from asmlib import *
from common import *

K3_GRID = 256
SLAB = 20480
RING0 = 4 * SLAB
RSTAGE = 5120
LOG2E = 1.4426950408889634


def interleave(m, others):
    res = []
    oi = 0
    for ins in m:
        res.append(ins)
        if oi < len(others):
            res.append(others[oi])
            oi += 1
    res += others[oi:]
    return res


def gen_k3(p):
    name = 'k3_kernel'
    p.raw(f'.globl {name}\n.p2align 8\n.type {name},@function\n{name}:')
    sX, sWS, sW2, sOut = 4, 6, 8, 10
    sW, sT0, sT1, sT2 = 12, 13, 14, 15
    SRD_X, SRD_W2, SRD_OUT, SRD_U, SRD_H, SRD_G = 16, 20, 24, 28, 32, 36
    sTB = 40
    sMg, sNs, sSlab, sRing, sKw, sKh, sCnt, sUo, sM = 42, 43, 44, 45, 46, 47, 48, 49, 50
    p(f's_cmp_ge_u32 s2, {K3_GRID}')
    p('s_cbranch_scc1 K3_END')
    p(f's_load_dwordx2 {s(sX, 2)}, s[0:1], 0')
    p(f's_load_dwordx4 {s(sW2, 4)}, s[0:1], 48')
    p(f's_load_dwordx2 {s(sWS, 2)}, s[0:1], 72')
    p(f's_getpc_b64 {s(sTB, 2)}')
    p(f's_add_u32 {s(sTB)}, {s(sTB)}, TBL_E32I@rel32@lo+4')
    p(f's_addc_u32 {s(sTB + 1)}, {s(sTB + 1)}, TBL_E32I@rel32@hi+12')
    vLane, vT0, vT1, vT2, vT3 = 1, 2, 3, 4, 5
    vN, vQ, vG = 6, 7, 8
    p(f'v_lshrrev_b32 {v(vT0)}, 6, v0')
    p(f'v_and_b32 {v(vLane)}, 63, v0')
    p(f'v_readfirstlane_b32 {s(sW)}, {v(vT0)}')
    p(f's_and_b32 {s(sT0)}, s2, 7')
    p(f's_lshr_b32 {s(sT1)}, s2, 3')
    p(f's_lshl_b32 {s(sMg)}, {s(sT0)}, 2')
    p(f's_and_b32 {s(sT2)}, {s(sT1)}, 3')
    p(f's_add_u32 {s(sMg)}, {s(sMg)}, {s(sT2)}')
    p(f's_lshr_b32 {s(sNs)}, {s(sT1)}, 2')
    p(f'v_and_b32 {v(vN)}, 15, {v(vLane)}')
    p(f'v_lshrrev_b32 {v(vQ)}, 4, {v(vLane)}')
    p(f'v_lshrrev_b32 {v(vG)}, 2, {v(vN)}')
    p(f'v_sub_u32 {v(vG)}, 0, {v(vG)}')
    p(f'v_and_b32 {v(vG)}, 3, {v(vG)}')
    p(f's_mul_i32 {s(sSlab)}, {s(sW)}, {SLAB}')
    p(f's_add_u32 {s(sRing)}, {s(sSlab)}, {RING0}')
    vDU = 10
    for i in range(5):
        p(f'v_add_u32 {v(vT0)}, {64 * i}, {v(vLane)}')
        p(f'v_mul_u32_u24 {v(vT1)}, 52429, {v(vT0)}')
        p(f'v_lshrrev_b32 {v(vT1)}, 20, {v(vT1)}')
        p(f'v_mul_u32_u24 {v(vT2)}, 20, {v(vT1)}')
        p(f'v_sub_u32 {v(vT0)}, {v(vT0)}, {v(vT2)}')
        p(f'v_bfe_u32 {v(vT2)}, {v(vT1)}, 2, 1')
        p(f'v_lshlrev_b32 {v(vT2)}, 1, {v(vT2)}')
        p(f'v_xor_b32 {v(vT0)}, {v(vT0)}, {v(vT2)}')
        p(f'v_mul_u32_u24 {v(vT1)}, 1280, {v(vT1)}')
        p(f'v_lshl_add_u32 {v(vDU + i)}, {v(vT0)}, 4, {v(vT1)}')
    p(f's_mul_i32 {s(sUo)}, {s(sMg)}, {64 * 1280}')
    p(f's_mul_i32 {s(sT0)}, {s(sW)}, 320')
    p(f's_add_u32 {s(sUo)}, {s(sUo)}, {s(sT0)}')
    p('s_waitcnt lgkmcnt(0)')
    srd(p, SRD_X, sX, 0, XN_BYTES)
    srd(p, SRD_W2, sW2, 0, W2_BYTES)
    srd(p, SRD_OUT, sOut, 0, XN_BYTES)
    srd(p, SRD_U, sWS, U_OFF, U_BYTES)
    srd(p, SRD_H, sWS, H_OFF, H_BYTES)
    srd(p, SRD_G, sWS, G_OFF, G_BYTES)
    p(f's_mov_b32 {s(sM)}, {s(sSlab)}')
    for g in range(4):
        for i in range(5):
            p(f's_mov_b32 m0, {s(sM)}')
            p(f'buffer_load_dwordx4 {v(vDU + i)}, {s(SRD_U, 4)}, {s(sUo)} offen lds')
            p(f's_add_u32 {s(sM)}, {s(sM)}, 1024')
        p(f's_add_u32 {s(sUo)}, {s(sUo)}, {16 * 1280}')
    ACC = 176
    UA, EI, PQ, ZO = 176, 216, 232, 248
    p(f'v_lshlrev_b32 {v(vT0)}, 4, {v(vLane)}')
    for f in range(4):
        p(f'global_load_dwordx4 {v(EI + 4 * f, 4)}, {v(vT0)}, {s(sTB, 2)} offset:{1024 * f}')

    HB, AF = 64, 128
    GA, ZB = 64, 144
    vDW = 16
    vDH = 21
    vAT = 25
    vGo = 26
    vZA = 27
    for r in range(16, 29):
        p(f'v_mov_b32 {v(r)}, 0')
    p(f's_cmp_eq_u32 {s(sW)}, 3')
    p('s_cbranch_scc1 K3_DFT_PRE')
    p(f's_mul_i32 {s(sT0)}, {s(sNs)}, 160')
    for i in range(5):
        p(f'v_add_u32 {v(vT0)}, {64 * i}, {v(vLane)}')
        p(f'v_mul_u32_u24 {v(vT1)}, 52429, {v(vT0)}')
        p(f'v_lshrrev_b32 {v(vT1)}, 19, {v(vT1)}')
        p(f'v_mul_u32_u24 {v(vT2)}, 10, {v(vT1)}')
        p(f'v_sub_u32 {v(vT0)}, {v(vT0)}, {v(vT2)}')
        p(f'v_bfe_u32 {v(vT2)}, {v(vT1)}, 2, 2')
        p(f'v_lshlrev_b32 {v(vT2)}, 3, {v(vT2)}')
        p(f'v_and_b32 {v(vT3)}, 3, {v(vT1)}')
        p(f'v_add_u32 {v(vT2)}, {v(vT2)}, {v(vT3)}')
        p(f'v_lshrrev_b32 {v(vT3)}, 4, {v(vT1)}')
        p(f'v_lshl_add_u32 {v(vT2)}, {v(vT3)}, 2, {v(vT2)}')
        p(f'v_mul_u32_u24 {v(vT2)}, 1280, {v(vT2)}')
        p(f'v_lshl_add_u32 {v(vT2)}, {v(vT0)}, 4, {v(vT2)}')
        p(f'v_add_u32 {v(vDW + i)}, {s(sT0)}, {v(vT2)}')
        if 0 < i < 4:
            p(f'v_subrev_u32 {v(vDW + i)}, {1024 * i}, {v(vDW + i)}')
    p(f'v_lshlrev_b32 {v(vT0)}, 6, {v(vN)}')
    p(f's_lshl_b32 {s(sT0)}, {s(sMg)}, 1')
    p(f'v_add_u32 {v(vT0)}, {s(sT0)}, {v(vT0)}')
    p(f'v_mul_u32_u24 {v(vT0)}, 3072, {v(vT0)}')
    p(f'v_lshl_add_u32 {v(vT0)}, {v(vQ)}, 4, {v(vT0)}')
    p(f's_lshl_b32 {s(sT0)}, {s(sW)}, 10')
    p(f'v_add_u32 {v(vDH)}, {s(sT0)}, {v(vT0)}')
    for nt in range(1, 4):
        p(f'v_add_u32 {v(vDH + nt)}, {(1024 * (nt & 1) + (nt >> 1)) * 3072}, {v(vDH)}')
    p(f'v_lshrrev_b32 {v(vT0)}, 2, {v(vN)}')
    p(f'v_lshl_add_u32 {v(vT0)}, {v(vQ)}, 2, {v(vT0)}')
    p(f'v_mul_u32_u24 {v(vT0)}, 160, {v(vT0)}')
    p(f'v_and_b32 {v(vT1)}, 3, {v(vN)}')
    p(f'v_lshl_add_u32 {v(vT0)}, {v(vT1)}, 3, {v(vT0)}')
    p(f'v_add_u32 {v(vAT)}, {s(sRing)}, {v(vT0)}')
    p(f's_mul_i32 {s(sKw)}, {s(sW)}, {512 * 1280}')
    p(f's_mov_b32 {s(sKh)}, 0')

    def g2_dma(slot):
        out = [f's_add_u32 m0, {s(sRing)}, {slot * RSTAGE}']
        for i in range(4):
            out.append(f'buffer_load_dwordx4 {v(vDW + i)}, {s(SRD_W2, 4)}, {s(sKw)} offen offset:{1024 * i} lds')
        out.append(f's_add_u32 m0, {s(sRing)}, {slot * RSTAGE + 4096}')
        out.append(f'buffer_load_dwordx4 {v(vDW + 4)}, {s(SRD_W2, 4)}, {s(sKw)} offen lds')
        out.append(f's_add_u32 {s(sKw)}, {s(sKw)}, {32 * 1280}')
        return out

    def g2_h(slot):
        out = []
        for nt in range(4):
            out.append(f'buffer_load_dwordx4 {v(HB + 16 * slot + 4 * nt, 4)}, {v(vDH + nt)}, {s(SRD_H, 4)}, {s(sKh)} offen')
        out.append(f's_add_u32 {s(sKh)}, {s(sKh)}, 64')
        return out

    for st in range(4):
        for ins in g2_dma(st) + g2_h(st):
            p(ins)
    p('s_branch K3_I2')
    p.label('K3_DFT_PRE', pad=4)
    p(f'v_lshlrev_b32 {v(vGo)}, 4, {v(vLane)}')
    p(f's_mul_i32 {s(sKw)}, {s(sNs)}, {100 * 1024}')

    def d_g(slot):
        out = []
        for mt in range(4):
            out.append(f'buffer_load_dwordx4 {v(GA + 20 * slot + 4 * mt, 4)}, {v(vGo)}, {s(SRD_G, 4)}, {s(sKw)} offen offset:{1024 * mt}')
        out.append(f's_add_u32 {s(sKw)}, {s(sKw)}, 4096')
        out.append(f'buffer_load_dwordx4 {v(GA + 20 * slot + 16, 4)}, {v(vGo)}, {s(SRD_G, 4)}, {s(sKw)} offen')
        out.append(f's_add_u32 {s(sKw)}, {s(sKw)}, 1024')
        return out

    for st in range(4):
        for ins in d_g(st):
            p(ins)
    p(f'v_xor_b32 {v(vT0)}, {v(vQ)}, {v(vG)}')
    p(f'v_mul_u32_u24 {v(vT1)}, 320, {v(vN)}')
    p(f'v_lshl_add_u32 {v(vZA)}, {v(vT0)}, 4, {v(vT1)}')
    p(f'v_add_u32 {v(vZA + 1)}, {2 * SLAB}, {v(vZA)}')

    p.label('K3_I2', pad=4)
    vUe, vUo_, vZe, vZo = 30, 31, 32, 33
    p(f'v_lshrrev_b32 {v(vT0)}, 2, {v(vN)}')
    p(f'v_lshl_add_u32 {v(vT0)}, {v(vQ)}, 2, {v(vT0)}')
    p(f'v_mul_u32_u24 {v(vT0)}, 320, {v(vT0)}')
    p(f'v_and_b32 {v(vT1)}, 3, {v(vN)}')
    p(f'v_lshl_add_u32 {v(vT0)}, {v(vT1)}, 3, {v(vT0)}')
    p(f'v_add_u32 {v(vT0)}, {s(sSlab)}, {v(vT0)}')
    p(f'v_and_b32 {v(vT1)}, 1, {v(vQ)}')
    p(f'v_lshlrev_b32 {v(vT1)}, 5, {v(vT1)}')
    p(f'v_add_u32 {v(vUe)}, {v(vT0)}, {v(vT1)}')
    p(f'v_sub_u32 {v(vUo_)}, {v(vT0)}, {v(vT1)}')
    p(f'v_mul_u32_u24 {v(vT0)}, 320, {v(vN)}')
    p(f'v_and_b32 {v(vT1)}, 1, {v(vQ)}')
    p(f'v_lshl_add_u32 {v(vT0)}, {v(vT1)}, 3, {v(vT0)}')
    p(f'v_add_u32 {v(vT0)}, {s(sSlab)}, {v(vT0)}')
    p(f'v_lshrrev_b32 {v(vT1)}, 1, {v(vQ)}')
    p(f'v_xor_b32 {v(vT1)}, {v(vT1)}, {v(vG)}')
    p(f'v_lshl_add_u32 {v(vZe)}, {v(vT1)}, 4, {v(vT0)}')
    p(f'v_xor_b32 {v(vT1)}, 2, {v(vT1)}')
    p(f'v_lshl_add_u32 {v(vZo)}, {v(vT1)}, 4, {v(vT0)}')
    p('s_waitcnt vmcnt(20)')
    for bsel in range(2):
        for mt in range(10):
            a = vUe if mt % 2 == 0 else vUo_
            off = bsel * 32 * 320 + mt * 32
            p(f'ds_read_b64_tr_b16 {v(UA + 4 * mt, 2)}, {v(a)} offset:{off}')
            p(f'ds_read_b64_tr_b16 {v(UA + 4 * mt + 2, 2)}, {v(a)} offset:{off + 16 * 320}')
            if mt == 6:
                p('s_waitcnt lgkmcnt(6)')
        p('s_waitcnt lgkmcnt(0)')

        def i2_mfma(mt):
            pq = PQ if mt % 2 == 0 else 40
            for nt in range(2):
                p(f'v_mfma_f32_16x16x32_bf16 {v(pq + 8 * nt, 4)}, {v(UA + 4 * mt, 4)}, {v(EI + 4 * nt, 4)}, 0')
                p(f'v_mfma_f32_16x16x32_bf16 {v(pq + 8 * nt + 4, 4)}, {v(UA + 4 * mt, 4)}, {v(EI + 8 + 4 * nt, 4)}, 0')

        def i2_post(mt):
            pq = PQ if mt % 2 == 0 else 40
            for nt in range(2):
                P, Q = pq + 8 * nt, pq + 8 * nt + 4
                zo = ZO + 4 * (mt % 2) + 2 * nt
                p(f'v_sub_f32 {v(P)}, {v(P)}, {v(Q + 1)}')
                p(f'v_add_f32 {v(P + 1)}, {v(P + 1)}, {v(Q)}')
                p(f'v_sub_f32 {v(P + 2)}, {v(P + 2)}, {v(Q + 3)}')
                p(f'v_add_f32 {v(P + 3)}, {v(P + 3)}, {v(Q + 2)}')
                p(f'v_cvt_pk_bf16_f32 {v(zo)}, {v(P)}, {v(P + 1)}')
                p(f'v_cvt_pk_bf16_f32 {v(zo + 1)}, {v(P + 2)}, {v(P + 3)}')
                p(f'ds_write_b64 {v(vZe if mt % 2 == 0 else vZo)}, {v(zo, 2)} offset:{(mt >> 1) * 64 + (32 * bsel + 16 * nt) * 320}')
        i2_mfma(0)
        for mt in range(10):
            if mt + 1 < 10:
                i2_mfma(mt + 1)
            i2_post(mt)
    p('s_waitcnt lgkmcnt(0)')
    p('s_barrier')
    vXo = 34
    XR = 40
    p(f's_and_b32 {s(sT0)}, {s(sW)}, 1')
    p(f's_lshl_b32 {s(sT0)}, {s(sT0)}, 10')
    p(f's_lshr_b32 {s(sT1)}, {s(sW)}, 1')
    p(f's_add_u32 {s(sT0)}, {s(sT0)}, {s(sT1)}')
    p(f's_lshl_b32 {s(sT1)}, {s(sMg)}, 1')
    p(f's_add_u32 {s(sT0)}, {s(sT0)}, {s(sT1)}')
    p(f'v_lshlrev_b32 {v(vT0)}, 6, {v(vN)}')
    p(f'v_add_u32 {v(vT0)}, {s(sT0)}, {v(vT0)}')
    p(f'v_mul_u32_u24 {v(vT0)}, 1280, {v(vT0)}')
    p(f'v_lshl_add_u32 {v(vT0)}, {v(vQ)}, 3, {v(vT0)}')
    p(f's_mul_i32 {s(sT0)}, {s(sNs)}, 160')
    p(f'v_add_u32 {v(vXo)}, {s(sT0)}, {v(vT0)}')
    for mt in range(5):
        p(f'buffer_load_dwordx2 {v(XR + 2 * mt, 2)}, {v(vXo)}, {s(SRD_X, 4)}, 0 offen offset:{32 * mt}')
    p(f's_cmp_eq_u32 {s(sW)}, 3')
    p('s_cbranch_scc1 K3_DFT_MAIN')

    def g2_reads(step):
        st, fs = step % 4, step % 2
        out = []
        for mt in range(5):
            off = st * RSTAGE + mt * 32
            out.append(f'ds_read_b64_tr_b16 {v(AF + 20 * fs + 4 * mt, 2)}, {v(vAT)} offset:{off}')
            out.append(f'ds_read_b64_tr_b16 {v(AF + 20 * fs + 4 * mt + 2, 2)}, {v(vAT)} offset:{off + 16 * 160}')
        return out

    def g2_mfmas(step, first):
        st, fs = step % 4, step % 2
        out = []
        for nt in range(4):
            for mt in range(5):
                acc = ACC + (nt * 5 + mt) * 4
                c = '0' if first else v(acc, 4)
                out.append(f'v_mfma_f32_16x16x32_bf16 {v(acc, 4)}, {v(AF + 20 * fs + 4 * mt, 4)}, {v(HB + 16 * st + 4 * nt, 4)}, {c}')
        return out

    p('s_waitcnt vmcnt(27)')
    for ins in g2_reads(0):
        p(ins)
    p('s_waitcnt lgkmcnt(0)')

    def g2_step(k, first, do_load, vm, has_next):
        if has_next:
            p(f's_waitcnt vmcnt({vm})')
        others = []
        if has_next:
            others += g2_reads(k + 1)
        if do_load:
            others += g2_dma(k % 4)
        for ins in interleave(g2_mfmas(k, first), others):
            p(ins)
        if do_load:
            for ins in g2_h(k % 4):
                p(ins)
        if has_next:
            p('s_waitcnt lgkmcnt(0)')

    for k in range(4):
        g2_step(k, k == 0, True, 22, True)
    p(f's_mov_b32 {s(sCnt)}, 2')
    p.loop_begin('K3_G2LOOP')
    for k in range(4, 8):
        g2_step(k, False, True, 22, True)
    p(f's_sub_u32 {s(sCnt)}, {s(sCnt)}, 1')
    p(f's_cmp_lg_u32 {s(sCnt)}, 0')
    p('s_cbranch_scc1 K3_G2LOOP')
    p.loop_end()
    g2_step(12, False, False, 22, True)
    g2_step(13, False, False, 13, True)
    g2_step(14, False, False, 4, True)
    p('s_waitcnt vmcnt(0)')
    g2_step(15, False, False, 0, False)
    p('s_branch K3_REDUCE')

    p.label('K3_DFT_MAIN', pad=4)

    def d_reads(kk):
        fs = kk % 2
        out = []
        slab = kk // 5
        for nt in range(4):
            off = (slab % 2) * SLAB + nt * 5120 + (kk % 5) * 64
            out.append(f'ds_read_b128 {v(ZB + 16 * fs + 4 * nt, 4)}, {v(vZA + slab // 2)} offset:{off}')
        return out

    def d_mfmas(kk, first):
        st, fs = kk % 4, kk % 2
        out = []
        for nt in range(4):
            for mt in range(5):
                acc = ACC + (nt * 5 + mt) * 4
                c = '0' if first else v(acc, 4)
                out.append(f'v_mfma_f32_16x16x32_bf16 {v(acc, 4)}, {v(GA + 20 * st + 4 * mt, 4)}, {v(ZB + 16 * fs + 4 * nt, 4)}, {c}')
        return out

    for ins in d_reads(0):
        p(ins)
    for kk in range(20):
        rem = min(3, 19 - kk)
        p(f's_waitcnt vmcnt({5 * rem}) lgkmcnt(0)')
        others = d_reads(kk + 1) if kk + 1 < 20 else []
        for ins in interleave(d_mfmas(kk, kk == 0), others):
            p(ins)
        if kk + 4 < 20:
            for ins in d_g(kk % 4):
                p(ins)
    p(f's_mov_b32 {s(sRing)}, 0')

    p.label('K3_REDUCE', pad=12)
    PJ = 64
    vRW, vRR = 35, 36
    p(f'v_lshlrev_b32 {v(vT0)}, 4, {v(vLane)}')
    p(f'v_add_u32 {v(vRW)}, {s(sRing)}, {v(vT0)}')
    p(f's_mul_i32 {s(sT0)}, {s(sW)}, 5120')
    p(f'v_add_u32 {v(vRR)}, {s(sT0)}, {v(vT0)}')
    p(f'v_add_u32 {v(vRR + 1)}, {RING0}, {v(vRR)}')
    for j in range(4):
        p(f's_cmp_eq_u32 {s(sW)}, {j}')
        p(f's_cbranch_scc1 K3_OWN{j}')
        for mt in range(5):
            p(f'ds_write_b128 {v(vRW)}, {v(ACC + (j * 5 + mt) * 4, 4)} offset:{(j * 5 + mt) * 1024}')
        p(f's_branch K3_RW{j}')
        p.label(f'K3_OWN{j}')
        for r in range(20):
            p(f'v_mov_b32 {v(PJ + 20 * j + r)}, {v(ACC + j * 20 + r)}')
        p.label(f'K3_RW{j}')
    p('s_waitcnt lgkmcnt(0)')
    p('s_barrier')
    for j in range(4):
        p(f's_cmp_eq_u32 {s(sW)}, {j}')
        p(f's_cbranch_scc1 K3_RR{j}')
        for mt in range(5):
            if j < 3:
                p(f'ds_read_b128 {v(PJ + 20 * j + 4 * mt, 4)}, {v(vRR + 1)} offset:{j * SLAB + mt * 1024}')
            else:
                p(f'ds_read_b128 {v(PJ + 20 * j + 4 * mt, 4)}, {v(vRR)} offset:{mt * 1024}')
        p.label(f'K3_RR{j}')
    vMask, vL2, vOne = 37, 38, 56
    p(f'v_mov_b32 {v(vMask)}, 0xffff0000')
    p(f'v_mov_b32 {v(vL2)}, {flit(-LOG2E)}')
    p(f'v_mov_b32 {v(vOne)}, 1.0')
    p('s_waitcnt vmcnt(0) lgkmcnt(0)')
    tb = 160
    for mt in range(5):
        o = tb + 16 * (mt % 4) + 12
        for hh in range(2):
            t = tb + 16 * (mt % 4) + 6 * hh
            G, E = t, t + 2
            r = 4 * mt + 2 * hh
            p(f'v_pk_add_f32 {v(G, 2)}, {v(PJ + r, 2)}, {v(PJ + 20 + r, 2)}')
            p(f'v_pk_add_f32 {v(G, 2)}, {v(G, 2)}, {v(PJ + 40 + r, 2)}')
            p(f'v_cvt_pk_bf16_f32 {v(t + 4)}, {v(G)}, {v(G + 1)}')
            p(f'v_cvt_pk_bf16_f32 {v(t + 5)}, {v(PJ + 60 + r)}, {v(PJ + 60 + r + 1)}')
            p(f'v_lshlrev_b32 {v(G)}, 16, {v(t + 4)}')
            p(f'v_and_b32 {v(G + 1)}, {v(vMask)}, {v(t + 4)}')
            p(f'v_pk_mul_f32 {v(E, 2)}, {v(G, 2)}, {v(vL2, 2)} op_sel_hi:[1,0]')
            p(f'v_exp_f32 {v(E)}, {v(E)}')
            p(f'v_exp_f32 {v(E + 1)}, {v(E + 1)}')
            p(f'v_pk_add_f32 {v(E, 2)}, {v(E, 2)}, {v(vOne, 2)} op_sel_hi:[1,0]')
            p(f'v_rcp_f32 {v(E)}, {v(E)}')
            p(f'v_rcp_f32 {v(E + 1)}, {v(E + 1)}')
            p(f'v_pk_mul_f32 {v(G, 2)}, {v(G, 2)}, {v(E, 2)}')
            p(f'v_cvt_pk_bf16_f32 {v(t + 4)}, {v(G)}, {v(G + 1)}')
            p(f'v_lshlrev_b32 {v(G)}, 16, {v(t + 4)}')
            p(f'v_and_b32 {v(G + 1)}, {v(vMask)}, {v(t + 4)}')
            p(f'v_lshlrev_b32 {v(E)}, 16, {v(t + 5)}')
            p(f'v_and_b32 {v(E + 1)}, {v(vMask)}, {v(t + 5)}')
            p(f'v_pk_mul_f32 {v(G, 2)}, {v(G, 2)}, {v(E, 2)}')
            p(f'v_cvt_pk_bf16_f32 {v(t + 4)}, {v(G)}, {v(G + 1)}')
            p(f'v_lshlrev_b32 {v(G)}, 16, {v(t + 4)}')
            p(f'v_and_b32 {v(G + 1)}, {v(vMask)}, {v(t + 4)}')
            p(f'v_lshlrev_b32 {v(E)}, 16, {v(XR + 2 * mt + hh)}')
            p(f'v_and_b32 {v(E + 1)}, {v(vMask)}, {v(XR + 2 * mt + hh)}')
            p(f'v_pk_add_f32 {v(G, 2)}, {v(G, 2)}, {v(E, 2)}')
            p(f'v_cvt_pk_bf16_f32 {v(o + hh)}, {v(G)}, {v(G + 1)}')
        p(f'buffer_store_dwordx2 {v(o, 2)}, {v(vXo)}, {s(SRD_OUT, 4)}, 0 offen offset:{32 * mt}')
    p.label('K3_END')
    p('s_endpgm')
    return dict(name=name, grid=K3_GRID, block=256, lds=RING0 + 3 * SLAB, vgpr=256, sgpr=64)
```

```python
import sys
from asmlib import *
from common import *
import gen_k1

HEADER = '''; Kernarg layout for this problem (80 bytes, ptrs only, base s[0:1]):
'''

def build(which=('k1', 'k2', 'k3')):
    kernels = []
    texts = []
    mods = {'k1': gen_k1.gen_k1}
    try:
        import gen_k2
        mods['k2'] = gen_k2.gen_k2
    except ImportError:
        pass
    try:
        import gen_k3
        mods['k3'] = gen_k3.gen_k3
    except ImportError:
        pass
    for k in which:
        if k not in mods:
            continue
        p = Prog()
        info = mods[k](p)
        kernels.append(info)
        texts.append(p.render())
    out = HEADER
    for k in kernels:
        out += f"; @launch kernel={k['name']} grid=({k['grid']},1,1) block=({k['block']},1,1) lds={k['lds']}\n"
    out += '.amdgcn_target "amdgcn-amd-amdhsa--gfx950"\n.text\n'
    out += ''.join(texts)
    out += '.section .rodata,"a"\n'
    for k in kernels:
        acc = k.get('accum', (k['vgpr'] + 3) // 4 * 4)
        out += f'''.p2align 6
.amdhsa_kernel {k['name']}
  .amdhsa_next_free_vgpr {k['vgpr']}
  .amdhsa_next_free_sgpr {k['sgpr']}
  .amdhsa_accum_offset {acc}
  .amdhsa_group_segment_fixed_size 0
  .amdhsa_kernarg_size 80
  .amdhsa_user_sgpr_count 2
  .amdhsa_user_sgpr_kernarg_segment_ptr 1
  .amdhsa_system_sgpr_workgroup_id_x 1
  .amdhsa_float_denorm_mode_32 3
.end_amdhsa_kernel
'''
    out += tbl_e32f() + tbl_e64() + tbl_e32i()
    return out

if __name__ == '__main__':
    dst = sys.argv[1] if len(sys.argv) > 1 else 'recurrent_scan__spectral_gfnet__glu_gated_swiglu__prompt.s'
    open(dst, 'w').write(build())
    print('wrote', dst)
```

```python
import numpy as np
from asmlib import *

S, D, F = 2048, 640, 1536
XN_OFF, XN_BYTES = 0x0, 2048 * 640 * 2
T_OFF, T_BYTES = 0x400000, 2048 * 640 * 2
U_OFF, U_BYTES = 0x800000, 2048 * 640 * 2
H_OFF, H_BYTES = 0xC00000, 2048 * 1536 * 2
G_OFF, G_BYTES = 0x1400000, 819200
C_OFF, C_BYTES = 0x1500000, 65536
W2F_OFF, W2F_BYTES = 0x1600000, 1536 * 640 * 2
W_BYTES = 2048 * 321 * 2
W13_BYTES = 640 * 1536 * 2
W2_BYTES = 1536 * 640 * 2


def srd(p, d, base, off, nbytes):
    if off:
        p(f's_add_u32 {s(d)}, {s(base)}, {off}')
        p(f's_addc_u32 {s(d + 1)}, {s(base + 1)}, 0')
    else:
        p(f's_mov_b32 {s(d)}, {s(base)}')
        p(f's_mov_b32 {s(d + 1)}, {s(base + 1)}')
    p(f's_mov_b32 {s(d + 2)}, {nbytes}')
    p(f's_mov_b32 {s(d + 3)}, 0x00020000')


def bf16_bits(x):
    x = np.asarray(x, dtype=np.float32)
    u = x.view(np.uint32).astype(np.uint64)
    r = (u + 0x7FFF + ((u >> 16) & 1)) >> 16
    return r.astype(np.uint16)


def emit_table(name, arr_f32):
    b = bf16_bits(np.asarray(arr_f32).astype(np.float32).ravel())
    w = b[0::2].astype(np.uint32) | (b[1::2].astype(np.uint32) << 16)
    out = ['.p2align 8', f'{name}:']
    for i in range(0, len(w), 8):
        out.append('  .long ' + ', '.join('0x%08x' % x for x in w[i:i + 8]))
    return '\n'.join(out) + '\n'


def cosf(num, den):
    return float(np.cos(2 * np.pi * (num % den) / den))


def sinf(num, den):
    r = num % den
    if (2 * r) % den == 0:
        return 0.0
    return float(np.sin(2 * np.pi * r / den))


def cosx(num, den):
    r = num % den
    if (4 * r) % den == 0 and ((4 * r) // den) % 2 == 1:
        return 0.0
    return float(np.cos(2 * np.pi * r / den))


def tbl_e32f():
    out = []
    for kind in range(3):
        for mt in range(2):
            for lane in range(64):
                m, q = lane & 15, lane >> 4
                ka = 16 * mt + m
                for t in range(8):
                    a = 4 * q + t if t < 4 else 16 + 4 * q + (t - 4)
                    val = [cosx(a * ka, 32), sinf(a * ka, 32), -sinf(a * ka, 32)][kind]
                    out.append(val)
    return emit_table('TBL_E32F', out)


def tbl_e64():
    out = []
    for kind in range(2):
        for mt in range(2):
            for kk in range(4):
                for lane in range(64):
                    m, h = lane & 31, lane >> 5
                    row = 32 * mt + m
                    for t in range(8):
                        b = 16 * kk + 8 * (t >> 2) + 4 * h + (t & 3)
                        out.append([cosx(row * b, 64), sinf(row * b, 64)][kind])
    return emit_table('TBL_E64', out)


def tbl_e32i():
    out = []
    for kind in range(2):
        for nt in range(2):
            for lane in range(64):
                n, q = lane & 15, lane >> 4
                ap = 16 * nt + n
                for t in range(8):
                    ka = 4 * q + t if t < 4 else 16 + 4 * q + (t - 4)
                    out.append([cosx(ap * ka, 32), sinf(ap * ka, 32)][kind])
    return emit_table('TBL_E32I', out)


import os
DIAG = int(os.environ.get('DIAG', '0'))
DIAG_OFF = 0x2000000


def stamp(p, i, real=False):
    if not DIAG:
        return
    p('s_memrealtime s[98:99]' if real else 's_memtime s[98:99]')
    p('s_waitcnt lgkmcnt(0)')
    p(f's_mov_b32 s{64 + i}, s98')


def diag_dump(p, kidx, sW, n=16, wpw=4):
    if not DIAG:
        return
    p('s_load_dwordx2 s[96:97], s[0:1], 72')
    p('s_waitcnt lgkmcnt(0)')
    p(f's_add_u32 s92, s96, {DIAG_OFF + kidx * 0x100000}')
    p('s_addc_u32 s93, s97, 0')
    p('s_mov_b32 s94, 0x100000')
    p('s_mov_b32 s95, 0x00020000')
    p(f's_mul_i32 s98, s2, {wpw}')
    p(f's_add_u32 s98, s98, s{sW}')
    p('s_lshl_b32 s98, s98, 6')
    p('s_mov_b64 exec, 1')
    p('v_mov_b32 v2, 0')
    for i in range(n):
        p(f'v_mov_b32 v3, s{64 + i}')
        p(f'buffer_store_dword v3, v2, s[92:95], s98 offen offset:{4 * i}')
        p('s_nop 1')
```

```python
from asmlib import *
from common import *

K1_MAIN = 256
K1_GRID = K1_MAIN
K1_BLOCK = 640
EXCH = 40960


def rot(p, dst, src, R, tmp):
    p(f'v_pk_mul_f32 {v(tmp, 2)}, {v(src, 2)}, {v(R, 2)} op_sel_hi:[1,0]')
    p(f'v_pk_fma_f32 {v(dst, 2)}, {v(src, 2)}, {v(R, 2)}, {v(tmp, 2)} op_sel:[1,1,0] op_sel_hi:[0,1,1] neg_lo:[1,0,0]')


def mod640_cs(p, dst, vint, t0, t1, negate):
    p(f'v_cvt_f32_u32 {v(t0)}, {v(vint)}')
    p(f'v_mul_f32 {v(t1)}, {flit(1.0 / 640.0)}, {v(t0)}')
    p(f'v_floor_f32 {v(t1)}, {v(t1)}')
    p(f'v_fmac_f32 {v(t0)}, {flit(-640.0)}, {v(t1)}')
    p(f'v_mul_f32 {v(t0)}, {flit((-1.0 if negate else 1.0) / 640.0)}, {v(t0)}')
    p(f'v_cos_f32 {v(dst)}, {v(t0)}')
    p(f'v_sin_f32 {v(dst + 1)}, {v(t0)}')


def gen_k1(p):
    name = 'k1_kernel'
    p.raw(f'.globl {name}\n.p2align 8\n.type {name},@function\n{name}:')
    sX, sWS = 4, 6
    SRD_X, SRD_XN, SRD_T, SRD_G = 8, 12, 16, 20
    sTB = 24
    sB, sJ, sW, sBoff, sTmp, sTmp2 = 26, 27, 28, 29, 30, 31
    sRow = 32
    sC5, sKh, sXo = 36, 37, 38
    p(f's_cmp_ge_u32 s2, {K1_GRID}')
    p('s_cbranch_scc1 K1_END')
    p(f's_load_dwordx2 {s(sX, 2)}, s[0:1], 0')
    p(f's_load_dwordx2 {s(sWS, 2)}, s[0:1], 72')
    p(f's_load_dwordx4 s[56:59], s[0:1], 8')
    vLane, vT0, vT1, vT2, vT3 = 1, 2, 3, 4, 5
    p(f'v_lshrrev_b32 {v(vT0)}, 6, v0')
    p(f'v_and_b32 {v(vLane)}, 63, v0')
    p(f'v_readfirstlane_b32 {s(sW)}, {v(vT0)}')
    stamp(p, 0, True)
    stamp(p, 1)
    p(f's_and_b32 {s(sB)}, s2, 63')
    p(f's_lshr_b32 {s(sJ)}, s2, 6')
    p(f's_mul_i32 {s(sBoff)}, {s(sB)}, 1280')
    vOffX, vA, vP = 6, 7, 8
    p(f'v_lshrrev_b32 {v(vA)}, 4, v0')
    p(f'v_and_b32 {v(vP)}, 15, v0')
    p(f's_mov_b32 {s(sTmp)}, 81920')
    p(f'v_mul_lo_u32 {v(vOffX)}, {v(vA)}, {s(sTmp)}')
    p(f'v_lshl_add_u32 {v(vOffX)}, {v(vP)}, 4, {v(vOffX)}')
    p(f's_cmp_ge_u32 {s(sW)}, 5')
    p(f's_cselect_b32 {s(sKh)}, 1, 0')
    p(f's_mul_i32 {s(sTmp)}, {s(sKh)}, 5')
    p(f's_sub_u32 {s(sC5)}, {s(sW)}, {s(sTmp)}')
    p(f's_getpc_b64 {s(sTB, 2)}')
    p(f's_add_u32 {s(sTB)}, {s(sTB)}, TBL_E32F@rel32@lo+4')
    p(f's_addc_u32 {s(sTB + 1)}, {s(sTB + 1)}, TBL_E32F@rel32@hi+12')
    p('s_waitcnt lgkmcnt(0)')
    srd(p, SRD_X, sX, 0, XN_BYTES)
    RAW = 16
    for i in range(5):
        p(f'buffer_load_dwordx4 {v(RAW + 4 * i, 4)}, {v(vOffX)}, {s(SRD_X, 4)}, {s(sBoff)} offen offset:{256 * i}')
    srd(p, SRD_XN, sWS, XN_OFF, XN_BYTES)
    srd(p, SRD_T, sWS, T_OFF, T_BYTES)
    E32 = 36
    p(f'v_lshlrev_b32 {v(vT0)}, 4, {v(vLane)}')
    p(f's_lshl_b32 {s(sTmp)}, {s(sKh)}, 10')
    p(f'v_add_u32 {v(vT0)}, {s(sTmp)}, {v(vT0)}')
    p(f'global_load_dwordx4 {v(E32, 4)}, {v(vT0)}, {s(sTB, 2)}')
    p(f'global_load_dwordx4 {v(E32 + 4, 4)}, {v(vT0)}, {s(sTB, 2)} offset:2048')
    p(f'v_add_u32 {v(vT1)}, 4096, {v(vT0)}')
    p(f'global_load_dwordx4 {v(E32 + 8, 4)}, {v(vT1)}, {s(sTB, 2)}')

    vKd, vQ, vM = 9, 10, 11
    FR = 48
    S_, Pa, Pb, R1, R32, TMP = 136, 138, 140, 142, 144, 146
    p(f'v_and_b32 {v(vM)}, 15, {v(vLane)}')
    p(f'v_lshrrev_b32 {v(vQ)}, 4, {v(vLane)}')
    p(f's_mul_i32 {s(sTmp)}, {s(sJ)}, 80')
    p(f's_lshl_b32 {s(sTmp2)}, {s(sC5)}, 4')
    p(f's_add_u32 {s(sTmp)}, {s(sTmp)}, {s(sTmp2)}')
    p(f'v_add_u32 {v(vKd)}, {s(sTmp)}, {v(vM)}')
    t0, t1, t2 = 150, 151, 152
    p(f's_mul_i32 {s(sTmp)}, {s(sKh)}, 40')
    p(f'v_add_u32 {v(t2)}, {s(sTmp)}, {v(vQ)}')
    p(f'v_mul_u32_u24 {v(t2)}, {v(vKd)}, {v(t2)}')
    p(f'v_lshlrev_b32 {v(t2)}, 3, {v(t2)}')
    mod640_cs(p, S_, t2, t0, t1, True)
    mod640_cs(p, R1, vKd, t0, t1, True)
    p(f'v_lshlrev_b32 {v(t2)}, 5, {v(vKd)}')
    mod640_cs(p, R32, t2, t0, t1, True)
    for kk in range(10):
        fc, fs = FR + 8 * kk, FR + 8 * kk + 4
        rot(p, Pa, S_, R1, TMP)
        p(f'v_cvt_pk_bf16_f32 {v(fc)}, {v(S_)}, {v(Pa)}')
        p(f'v_cvt_pk_bf16_f32 {v(fs)}, {v(S_ + 1)}, {v(Pa + 1)}')
        if kk < 9:
            rot(p, S_, S_, R32, TMP + 2)
        for e in range(1, 4):
            rot(p, Pb, Pa, R1, TMP)
            rot(p, Pa, Pb, R1, TMP)
            p(f'v_cvt_pk_bf16_f32 {v(fc + e)}, {v(Pb)}, {v(Pa)}')
            p(f'v_cvt_pk_bf16_f32 {v(fs + e)}, {v(Pb + 1)}, {v(Pa + 1)}')
    p(f's_or_b32 {s(sTmp)}, {s(sJ)}, {s(sC5)}')
    p(f's_cmp_lg_u32 {s(sTmp)}, 0')
    p('s_cbranch_scc1 K1_NOSPECIAL')
    p(f'v_cmp_eq_u32 vcc, 0, {v(vM)}')
    p('s_and_saveexec_b64 s[42:43], vcc')
    for kk in range(10):
        for e in range(4):
            p(f'v_mov_b32 {v(FR + 8 * kk + 4 + e)}, 0xbf803f80')
    p('s_mov_b64 exec, s[42:43]')
    p.label('K1_NOSPECIAL', pad=2)
    stamp(p, 2)

    p(f's_cmp_ge_u32 {s(sW)}, 8')
    p('s_cbranch_scc1 K1_HELPER')
    p('s_waitcnt vmcnt(0)')
    stamp(p, 3)
    A0, A1 = 2, 3
    vOnes = 4
    p(f'v_mov_b32 {v(vOnes)}, 0x3f803f80')
    p(f'v_mov_b32 {v(A0)}, 0')
    p(f'v_mov_b32 {v(A1)}, 0')
    for i in range(20):
        p(f'v_dot2_f32_bf16 {v(A0 + i % 2)}, {v(RAW + i)}, {v(vOnes)}, {v(A0 + i % 2)}')
    p(f'v_add_f32 {v(A0)}, {v(A0)}, {v(A1)}')

    def red16(r):
        p(f'v_add_f32_dpp {v(r)}, {v(r)}, {v(r)} quad_perm:[1,0,3,2] row_mask:0xf bank_mask:0xf')
        p(f'v_add_f32_dpp {v(r)}, {v(r)}, {v(r)} quad_perm:[2,3,0,1] row_mask:0xf bank_mask:0xf')
        p(f'v_add_f32_dpp {v(r)}, {v(r)}, {v(r)} row_half_mirror row_mask:0xf bank_mask:0xf')
        p(f'v_add_f32_dpp {v(r)}, {v(r)}, {v(r)} row_mirror row_mask:0xf bank_mask:0xf')
    red16(A0)
    vMean, vDel, vMb, vMask = 2, 3, 4, 5
    p(f'v_mul_f32 {v(vMean)}, {flit(1.0 / 640.0)}, {v(A0)}')
    p(f'v_cvt_pk_bf16_f32 {v(vMb)}, {v(vMean)}, {v(vMean)}')
    p(f'v_lshlrev_b32 {v(vMb)}, 16, {v(vMb)}')
    p(f'v_sub_f32 {v(vDel)}, {v(vMean)}, {v(vMb)}')
    SQ, TP = 12, 14
    p(f'v_mov_b32 {v(vMask)}, 0xffff0000')
    p(f'v_mov_b32 {v(SQ)}, 0')
    p(f'v_mov_b32 {v(SQ + 1)}, 0')
    for i in range(20):
        t = TP
        p(f'v_lshlrev_b32 {v(t)}, 16, {v(RAW + i)}')
        p(f'v_and_b32 {v(t + 1)}, {v(vMask)}, {v(RAW + i)}')
        p(f'v_pk_add_f32 {v(t, 2)}, {v(t, 2)}, {v(vMb, 2)} op_sel_hi:[1,0] neg_lo:[0,1] neg_hi:[0,1]')
        p(f'v_pk_fma_f32 {v(SQ, 2)}, {v(t, 2)}, {v(t, 2)}, {v(SQ, 2)}')
        p(f'v_cvt_pk_bf16_f32 {v(RAW + i)}, {v(t)}, {v(t + 1)}')
    p(f'v_add_f32 {v(SQ)}, {v(SQ)}, {v(SQ + 1)}')
    red16(SQ)
    vR = 4
    p(f'v_mul_f32 {v(SQ)}, {flit(1.0 / 640.0)}, {v(SQ)}')
    p(f'v_fma_f32 {v(SQ)}, -{v(vDel)}, {v(vDel)}, {v(SQ)}')
    p(f'v_max_f32 {v(SQ)}, 0, {v(SQ)}')
    p(f'v_cvt_pk_bf16_f32 {v(SQ)}, {v(SQ)}, {v(SQ)}')
    p(f'v_lshlrev_b32 {v(SQ)}, 16, {v(SQ)}')
    p(f'v_add_f32 {v(SQ)}, {flit(1e-5)}, {v(SQ)}')
    p(f'v_cvt_pk_bf16_f32 {v(SQ)}, {v(SQ)}, {v(SQ)}')
    p(f'v_lshlrev_b32 {v(SQ)}, 16, {v(SQ)}')
    p(f'v_sqrt_f32 {v(SQ)}, {v(SQ)}')
    p(f'v_cvt_pk_bf16_f32 {v(SQ)}, {v(SQ)}, {v(SQ)}')
    p(f'v_lshlrev_b32 {v(SQ)}, 16, {v(SQ)}')
    p(f'v_rcp_f32 {v(vR)}, {v(SQ)}')
    TPs = [12, 14]
    for i in range(20):
        t = TPs[i % 2]
        p(f'v_lshlrev_b32 {v(t)}, 16, {v(RAW + i)}')
        p(f'v_and_b32 {v(t + 1)}, {v(vMask)}, {v(RAW + i)}')
        p(f'v_pk_mul_f32 {v(t, 2)}, {v(t, 2)}, {v(vR, 2)} op_sel_hi:[1,0]')
        p(f'v_cvt_pk_bf16_f32 {v(RAW + i)}, {v(t)}, {v(t + 1)}')
    vL = 2
    p(f'v_and_b32 {v(3)}, 15, {v(vA)}')
    p(f'v_xor_b32 {v(3)}, {v(3)}, {v(vP)}')
    p(f'v_mul_u32_u24 {v(vL)}, 1280, {v(vA)}')
    p(f'v_lshl_add_u32 {v(vL)}, {v(3)}, 4, {v(vL)}')
    for i in range(5):
        p(f'ds_write_b128 {v(vL)}, {v(RAW + 4 * i, 4)} offset:{256 * i}')
    p(f's_lshr_b32 {s(sTmp)}, {s(sW)}, 1')
    p(f's_cmp_lg_u32 {s(sTmp)}, {s(sJ)}')
    p('s_cbranch_scc1 K1_LNDONE')
    p(f'v_lshrrev_b32 {v(3)}, 2, {v(vA)}')
    p(f'v_sub_u32 {v(3)}, 0, {v(3)}')
    p(f'v_xor_b32 {v(3)}, {v(3)}, {v(vP)}')
    p(f'v_and_b32 {v(3)}, 3, {v(3)}')
    p(f'v_lshlrev_b32 {v(3)}, 4, {v(3)}')
    p(f'v_lshl_add_u32 {v(3)}, {v(vA)}, 6, {v(3)}')
    p(f'v_lshrrev_b32 {v(4)}, 2, {v(vP)}')
    p(f'v_lshl_add_u32 {v(3)}, {v(4)}, 13, {v(3)}')
    p(f's_lshr_b32 {s(sTmp)}, {s(sB)}, 2')
    p(f's_mul_i32 {s(sXo)}, {s(sTmp)}, {20 * 8192}')
    p(f's_and_b32 {s(sTmp)}, {s(sB)}, 3')
    p(f's_lshl_b32 {s(sTmp)}, {s(sTmp)}, 11')
    p(f's_add_u32 {s(sXo)}, {s(sXo)}, {s(sTmp)}')
    for i in range(5):
        p(f'buffer_store_dwordx4 {v(RAW + 4 * i, 4)}, {v(3)}, {s(SRD_XN, 4)}, {s(sXo)} offen')
        if i < 4:
            p(f's_add_u32 {s(sXo)}, {s(sXo)}, {4 * 8192}')
    p.label('K1_LNDONE', pad=2)
    vAB = 12
    p(f'v_and_b32 {v(2)}, 3, {v(vM)}')
    p(f'v_xor_b32 {v(2)}, {v(2)}, {v(vQ)}')
    p(f'v_lshrrev_b32 {v(3)}, 2, {v(vM)}')
    p(f'v_mul_u32_u24 {v(4)}, 1280, {v(vM)}')
    p(f'v_lshl_add_u32 {v(4)}, {v(2)}, 4, {v(4)}')
    p(f's_lshl_b32 {s(sTmp)}, {s(sKh)}, 1')
    p(f's_lshl_b32 {s(sTmp2)}, {s(sKh)}, 9')
    for c in range(4):
        p(f's_add_u32 {s(40)}, {s(sTmp)}, {c}')
        p(f's_and_b32 {s(40)}, {s(40)}, 3')
        p(f'v_xor_b32 {v(2)}, {s(40)}, {v(3)}')
        p(f'v_lshl_add_u32 {v(vAB + c)}, {v(2)}, 6, {v(4)}')
        if c >= 2:
            p(f's_mul_i32 {s(41)}, {s(sKh)}, 768')
            p(f'v_add_u32 {v(vAB + c)}, {s(41)}, {v(vAB + c)}')
        else:
            p(f'v_add_u32 {v(vAB + c)}, {s(sTmp2)}, {v(vAB + c)}')
    p('s_waitcnt lgkmcnt(0)')
    stamp(p, 4)
    p('s_barrier')
    stamp(p, 5)
    Yr0, Yr1, Yi0, Yi1 = 2, 32, 128, 132
    AFR = 136

    def aread(k, mt):
        slot = (k % 4) * 2 + mt
        p(f'ds_read_b128 {v(AFR + 4 * slot, 4)}, {v(vAB + (k & 3))} offset:{256 * (k >> 2) + mt * 20480}')
    for k in range(4):
        aread(k, 0)
        aread(k, 1)
    for k in range(10):
        p(f's_waitcnt lgkmcnt({2 * min(3, 9 - k)})')
        a0, a1 = AFR + 4 * ((k % 4) * 2), AFR + 4 * ((k % 4) * 2 + 1)
        fc, fs = FR + 8 * k, FR + 8 * k + 4
        c = (lambda r: '0') if k == 0 else (lambda r: v(r, 4))
        p(f'v_mfma_f32_16x16x32_bf16 {v(Yr0, 4)}, {v(a0, 4)}, {v(fc, 4)}, {c(Yr0)}')
        p(f'v_mfma_f32_16x16x32_bf16 {v(Yi0, 4)}, {v(a0, 4)}, {v(fs, 4)}, {c(Yi0)}')
        p(f'v_mfma_f32_16x16x32_bf16 {v(Yr1, 4)}, {v(a1, 4)}, {v(fc, 4)}, {c(Yr1)}')
        p(f'v_mfma_f32_16x16x32_bf16 {v(Yi1, 4)}, {v(a1, 4)}, {v(fs, 4)}, {c(Yi1)}')
        if k + 4 < 10:
            aread(k + 4, 0)
            aread(k + 4, 1)
    stamp(p, 6)
    vEw, vEr = 12, 13
    p(f'v_lshlrev_b32 {v(vEw)}, 4, {v(vLane)}')
    p(f's_lshl_b32 {s(sTmp)}, {s(sW)}, 12')
    p(f's_add_u32 {s(sTmp)}, {s(sTmp)}, {EXCH}')
    p(f's_xor_b32 {s(sTmp2)}, {s(sKh)}, 1')
    p(f's_mul_i32 {s(sTmp2)}, {s(sTmp2)}, 5')
    p(f's_add_u32 {s(sTmp2)}, {s(sTmp2)}, {s(sC5)}')
    p(f's_lshl_b32 {s(sTmp2)}, {s(sTmp2)}, 12')
    p(f's_add_u32 {s(sTmp2)}, {s(sTmp2)}, {EXCH}')
    p(f'v_add_u32 {v(vEr)}, {s(sTmp2)}, {v(vEw)}')
    p(f'v_add_u32 {v(vEw)}, {s(sTmp)}, {v(vEw)}')
    TW = 48
    p(f'v_lshlrev_b32 {v(14)}, 2, {v(vQ)}')
    p(f's_lshl_b32 {s(sTmp)}, {s(sKh)}, 4')
    p(f'v_add_u32 {v(14)}, {s(sTmp)}, {v(14)}')
    p(f'v_cvt_f32_u32 {v(14)}, {v(14)}')
    p(f'v_cvt_f32_u32 {v(15)}, {s(sB)}')
    p(f'v_mul_f32 {v(15)}, {flit(-1.0 / 2048.0)}, {v(15)}')
    for i, r in enumerate((Yr0, Yr1, Yi0, Yi1)):
        p(f'ds_write_b128 {v(vEw)}, {v(r, 4)} offset:{1024 * i}')
    for i in range(4):
        p(f'v_add_f32 {v(56)}, {flit(float(i))}, {v(14)}')
        p(f'v_mul_f32 {v(56)}, {v(56)}, {v(15)}')
        p(f'v_cos_f32 {v(TW + 2 * i)}, {v(56)}')
        p(f'v_sin_f32 {v(TW + 2 * i + 1)}, {v(56)}')
    vOffT = 57
    p(f's_mov_b32 {s(sTmp)}, {4 * 81920}')
    p(f'v_mul_lo_u32 {v(vOffT)}, {v(vQ)}, {s(sTmp)}')
    p(f'v_lshl_add_u32 {v(vOffT)}, {v(vM)}, 2, {v(vOffT)}')
    p(f's_mul_i32 {s(sTmp)}, {s(sJ)}, 5')
    p(f's_add_u32 {s(sTmp)}, {s(sTmp)}, {s(sC5)}')
    p(f's_lshl_b32 {s(sTmp)}, {s(sTmp)}, 12')
    p(f's_lshl_b32 {s(sTmp2)}, {s(sB)}, 6')
    p(f's_add_u32 {s(sTmp)}, {s(sTmp)}, {s(sTmp2)}')
    p(f's_mul_i32 {s(sTmp2)}, {s(sKh)}, {16 * 81920}')
    p(f's_add_u32 {s(sTmp)}, {s(sTmp)}, {s(sTmp2)}')
    for i in range(4):
        p(f's_add_u32 {s(sRow + i)}, {s(sTmp)}, {i * 81920}')
    p('s_waitcnt lgkmcnt(0)')
    p('s_barrier')
    PB = 64
    for i in range(4):
        p(f'ds_read_b128 {v(PB + 4 * i, 4)}, {v(vEr)} offset:{1024 * i}')
    p('s_waitcnt lgkmcnt(0)')
    for i, r in enumerate((Yr0, Yr1, Yi0, Yi1)):
        p(f'v_pk_add_f32 {v(PB + 4 * i, 2)}, {v(PB + 4 * i, 2)}, {v(r, 2)}')
        p(f'v_pk_add_f32 {v(PB + 4 * i + 2, 2)}, {v(PB + 4 * i + 2, 2)}, {v(r + 2, 2)}')
    Br, Bi = 80, 84
    for i in range(4):
        p(f'v_cvt_pk_bf16_f32 {v(Br + i)}, {v(PB + 2 * i)}, {v(PB + 2 * i + 1)}')
    for i in range(4):
        p(f'v_cvt_pk_bf16_f32 {v(Bi + i)}, {v(PB + 8 + 2 * i)}, {v(PB + 8 + 2 * i + 1)}')
    Tr, Ti = 88, 92
    p(f'v_mfma_f32_16x16x32_bf16 {v(Tr, 4)}, {v(E32, 4)}, {v(Br, 4)}, 0')
    p(f'v_mfma_f32_16x16x32_bf16 {v(Ti, 4)}, {v(E32, 4)}, {v(Bi, 4)}, 0')
    p(f'v_mfma_f32_16x16x32_bf16 {v(Tr, 4)}, {v(E32 + 4, 4)}, {v(Bi, 4)}, {v(Tr, 4)}')
    p(f'v_mfma_f32_16x16x32_bf16 {v(Ti, 4)}, {v(E32 + 8, 4)}, {v(Br, 4)}, {v(Ti, 4)}')
    for r in range(4):
        c_, s_ = TW + 2 * r, TW + 2 * r + 1
        tr, ti = Tr + r, Ti + r
        o1, o2 = 96 + 2 * r, 97 + 2 * r
        p(f'v_mul_f32 {v(o1)}, {v(tr)}, {v(c_)}')
        p(f'v_mul_f32 {v(o2)}, {v(tr)}, {v(s_)}')
        p(f'v_fma_f32 {v(o1)}, -{v(ti)}, {v(s_)}, {v(o1)}')
        p(f'v_fmac_f32 {v(o2)}, {v(ti)}, {v(c_)}')
        p(f'v_cvt_pk_bf16_f32 {v(104 + r)}, {v(o1)}, {v(o2)}')
        p(f'buffer_store_dword {v(104 + r)}, {v(vOffT)}, {s(SRD_T, 4)}, {s(sRow + r)} offen')
    stamp(p, 7)
    if DIAG:
        p('s_waitcnt vmcnt(0)')
    stamp(p, 8)
    stamp(p, 9, True)
    diag_dump(p, 0, sW, wpw=16)
    p('s_endpgm')

    p.label('K1_HELPER', pad=4)
    p('s_waitcnt vmcnt(0)')
    sHs, sFr, sMt, sKk, sNs = 60, 32, 33, 34, 35
    SRD_WR, SRD_WI, SRD_C = 44, 48, 52
    p(f's_lshl_b32 {s(sHs)}, s2, 1')
    p(f's_add_u32 {s(sHs)}, {s(sHs)}, {s(sW)}')
    p(f's_sub_u32 {s(sHs)}, {s(sHs)}, 8')
    srd(p, SRD_G, sWS, G_OFF, G_BYTES)
    NN = 2048.0 * 640.0
    vD, vK0, vSgn, vNN = 6, 7, 8, 12
    p(f'v_mov_b32 {v(vNN)}, {flit(1.0 / NN)}')
    p(f's_mov_b32 {s(sFr)}, {s(sHs)}')
    p.label('K1_GTASK', pad=2)
    p(f's_mul_hi_u32 {s(sTmp)}, {s(sFr)}, 0x33333334')
    p(f's_mul_i32 {s(sTmp2)}, {s(sTmp)}, 5')
    p(f's_sub_u32 {s(sMt)}, {s(sFr)}, {s(sTmp2)}')
    p(f's_mul_hi_u32 {s(sNs)}, {s(sTmp)}, 0x0ccccccd')
    p(f's_mul_i32 {s(sTmp2)}, {s(sNs)}, 20')
    p(f's_sub_u32 {s(sKk)}, {s(sTmp)}, {s(sTmp2)}')
    p(f's_mul_i32 {s(sTmp)}, {s(sNs)}, 80')
    p(f's_lshl_b32 {s(sTmp2)}, {s(sMt)}, 4')
    p(f's_add_u32 {s(sTmp)}, {s(sTmp)}, {s(sTmp2)}')
    p(f'v_add_u32 {v(vD)}, {s(sTmp)}, {v(vM)}')
    p(f'v_lshlrev_b32 {v(vK0)}, 2, {v(vQ)}')
    p(f's_lshl_b32 {s(sTmp)}, {s(sKk)}, 4')
    p(f'v_add_u32 {v(vK0)}, {s(sTmp)}, {v(vK0)}')
    p(f'v_lshlrev_b32 {v(vSgn)}, 31, {v(vD)}')
    p(f'v_or_b32 {v(vSgn)}, {flit(1.0 / NN)}, {v(vSgn)}')
    for e in range(4):
        p(f'v_add_u32 {v(13)}, {e}, {v(vK0)}')
        p(f'v_mul_u32_u24 {v(14)}, {v(13)}, {v(vD)}')
        mod640_cs(p, 20, 14, vT0, vT1, False)
        p(f'v_mul_f32 {v(20)}, {flit(2.0 / NN)}, {v(20)}')
        p(f'v_mul_f32 {v(21)}, {flit(-2.0 / NN)}, {v(21)}')
        if e == 0:
            p(f'v_cmp_eq_u32 vcc, 0, {v(13)}')
            p(f'v_cndmask_b32 {v(20)}, {v(20)}, {v(vNN)}, vcc')
            p(f'v_cndmask_b32 {v(21)}, {v(21)}, {v(vSgn)}, vcc')
        p(f'v_cvt_pk_bf16_f32 {v(16 + e)}, {v(20)}, {v(21)}')
    p(f's_lshl_b32 {s(sTmp)}, {s(sFr)}, 10')
    p(f'v_lshlrev_b32 {v(vT0)}, 4, {v(vLane)}')
    p(f'buffer_store_dwordx4 {v(16, 4)}, {v(vT0)}, {s(SRD_G, 4)}, {s(sTmp)} offen')
    p(f's_add_u32 {s(sFr)}, {s(sFr)}, 512')
    p(f's_cmp_lt_u32 {s(sFr)}, 800')
    p('s_cbranch_scc1 K1_GTASK')
    p(f's_cmp_lt_u32 {s(sHs)}, 448')
    p('s_cbranch_scc1 K1_HELPDONE')
    p(f's_sub_u32 {s(sTmp)}, {s(sHs)}, 448')
    p(f's_lshr_b32 {s(32)}, {s(sTmp)}, 5')
    p(f's_and_b32 {s(33)}, {s(sTmp)}, 31')
    p(f's_lshr_b32 {s(34)}, {s(33)}, 4')
    p(f's_lshl_b32 {s(34)}, {s(34)}, 5')
    p(f's_bfe_u32 {s(35)}, {s(33)}, 0x20002')
    p(f's_lshl_b32 {s(35)}, {s(35)}, 3')
    p(f's_add_u32 {s(34)}, {s(34)}, {s(35)}')
    p(f's_and_b32 {s(35)}, {s(33)}, 3')
    p(f's_add_u32 {s(34)}, {s(34)}, {s(35)}')
    p(f's_lshl_b32 {s(34)}, {s(34)}, 5')
    p(f's_lshl_b32 {s(35)}, {s(32)}, 4')
    p(f's_add_u32 {s(34)}, {s(34)}, {s(35)}')
    vKs, vKn, vA1, vA2 = 6, 7, 8, 12
    p(f'v_bfe_u32 {v(vKs)}, {v(vLane)}, 1, 4')
    p(f'v_lshrrev_b32 {v(vT0)}, 5, {v(vLane)}')
    p(f'v_lshl_add_u32 {v(vKs)}, {v(vT0)}, 7, {v(vKs)}')
    p(f'v_add_u32 {v(vKs)}, {s(34)}, {v(vKs)}')
    p(f'v_sub_u32 {v(vKn)}, 0, {v(vKs)}')
    p(f'v_and_b32 {v(vKn)}, 2047, {v(vKn)}')
    p(f'v_mul_u32_u24 {v(vA1)}, 642, {v(vKs)}')
    p(f'v_mul_u32_u24 {v(vA2)}, 642, {v(vKn)}')
    srd(p, SRD_WR, 56, 0, W_BYTES)
    srd(p, SRD_WI, 58, 0, W_BYTES)
    srd(p, SRD_C, sWS, C_OFF, C_BYTES)
    b = 20
    p(f'buffer_load_ushort {v(b + 0)}, {v(vA1)}, {s(SRD_WR, 4)}, 0 offen')
    p(f'buffer_load_ushort {v(b + 1)}, {v(vA1)}, {s(SRD_WI, 4)}, 0 offen')
    p(f'buffer_load_ushort {v(b + 2)}, {v(vA2)}, {s(SRD_WR, 4)}, 0 offen')
    p(f'buffer_load_ushort {v(b + 3)}, {v(vA2)}, {s(SRD_WI, 4)}, 0 offen')
    p(f'buffer_load_ushort {v(b + 4)}, {v(vA1)}, {s(SRD_WR, 4)}, 0 offen offset:640')
    p(f'buffer_load_ushort {v(b + 5)}, {v(vA1)}, {s(SRD_WI, 4)}, 0 offen offset:640')
    p(f'buffer_load_ushort {v(b + 6)}, {v(vA2)}, {s(SRD_WR, 4)}, 0 offen offset:640')
    p(f'buffer_load_ushort {v(b + 7)}, {v(vA2)}, {s(SRD_WI, 4)}, 0 offen offset:640')
    p(f'v_and_b32 {v(vT0)}, 1, {v(vLane)}')
    p(f'v_lshlrev_b32 {v(vT1)}, 31, {v(vT0)}')
    p(f'v_xor_b32 {v(vT2)}, 0x80000000, {v(vT1)}')
    p('s_waitcnt vmcnt(0)')
    for e in range(8):
        p(f'v_lshlrev_b32 {v(b + e)}, 16, {v(b + e)}')
    p(f'v_add_f32 {v(b + 0)}, {v(b + 0)}, {v(b + 2)}')
    p(f'v_sub_f32 {v(b + 1)}, {v(b + 1)}, {v(b + 3)}')
    p(f'v_add_f32 {v(b + 4)}, {v(b + 4)}, {v(b + 6)}')
    p(f'v_sub_f32 {v(b + 5)}, {v(b + 5)}, {v(b + 7)}')
    o = 28
    p(f'v_add_f32 {v(o + 0)}, {v(b + 0)}, {v(b + 4)}')
    p(f'v_add_f32 {v(o + 1)}, {v(b + 1)}, {v(b + 5)}')
    p(f'v_sub_f32 {v(o + 2)}, {v(b + 0)}, {v(b + 4)}')
    p(f'v_sub_f32 {v(o + 3)}, {v(b + 1)}, {v(b + 5)}')
    for e in range(4):
        p(f'v_mul_f32 {v(o + e)}, 0.25, {v(o + e)}')
    p(f'v_xor_b32 {v(o + 1)}, {v(o + 1)}, {v(vT2)}')
    p(f'v_xor_b32 {v(o + 2)}, {v(o + 2)}, {v(vT1)}')
    p(f's_lshl_b32 {s(sTmp)}, {s(sTmp)}, 10')
    p(f'v_lshlrev_b32 {v(vT0)}, 4, {v(vLane)}')
    p(f'buffer_store_dwordx4 {v(o, 4)}, {v(vT0)}, {s(SRD_C, 4)}, {s(sTmp)} offen')
    p.label('K1_HELPDONE')
    p('s_waitcnt vmcnt(0)')
    stamp(p, 3)
    p('s_branch K1_LNDONE')
    p.label('K1_END')
    p('s_endpgm')
    return dict(name=name, grid=K1_GRID, block=K1_BLOCK, lds=2 * EXCH, vgpr=168, sgpr=102 if DIAG else 64)
```

```python
from asmlib import *
from common import *

NGEMM = 256
NFFT = 160
NRET = 48
K2_GRID = NGEMM + NFFT + 1 + NRET
STAGE = 20480
LOG2E = 1.4426950408889634
DPP_SWAP = 'quad_perm:[1,0,3,2] row_mask:0xf bank_mask:0xf'


def gen_k2(p):
    name = 'k2_kernel'
    p.raw(f'.globl {name}\n.p2align 8\n.type {name},@function\n{name}:')
    sWr, sWi, sW1, sW3, sWS = 4, 6, 8, 10, 12
    sW, sT0, sT1, sT2 = 14, 15, 44, 45
    p(f's_cmp_ge_u32 s2, {K2_GRID}')
    p('s_cbranch_scc1 K2_END')
    p(f's_load_dwordx4 {s(sWr, 4)}, s[0:1], 8')
    p(f's_load_dwordx4 {s(sW1, 4)}, s[0:1], 32')
    p(f's_load_dwordx2 {s(sWS, 2)}, s[0:1], 72')
    vLane, vT0, vT1, vT2, vT3 = 1, 2, 3, 4, 5
    p(f'v_lshrrev_b32 {v(vT0)}, 6, v0')
    p(f'v_and_b32 {v(vLane)}, 63, v0')
    p(f'v_readfirstlane_b32 {s(sW)}, {v(vT0)}')
    p(f's_cmp_ge_u32 s2, {NGEMM}')
    p('s_cbranch_scc1 K2_FFT')
    gen_gemm(p, locals())
    p.label('K2_FFT', pad=4)
    p(f's_cmp_gt_u32 s2, {NGEMM + NFFT}')
    p('s_cbranch_scc1 K2_RETILE')
    gen_fft(p, locals())
    p.label('K2_RETILE', pad=4)
    gen_retile(p, locals())
    p.label('K2_END')
    p('s_endpgm')
    return dict(name=name, grid=K2_GRID, block=256, lds=4 * STAGE, vgpr=256, sgpr=102 if DIAG else 48)


def gen_gemm(p, L):
    sW1, sW3, sWS, sW, sT0, sT1, sT2 = (L[k] for k in ('sW1', 'sW3', 'sWS', 'sW', 'sT0', 'sT1', 'sT2'))
    vLane, vT0, vT1, vT2, vT3 = (L[k] for k in ('vLane', 'vT0', 'vT1', 'vT2', 'vT3'))
    SRD_XN, SRD_W, SRD_H = 16, 20, 24
    sMt, sFt, sKx, sKw, sM0x, sM0w, sCnt = 28, 29, 30, 31, 32, 33, 34
    stamp(p, 0, True)
    stamp(p, 1)
    p(f's_and_b32 {s(sT0)}, s2, 7')
    p(f's_lshr_b32 {s(sT1)}, s2, 3')
    p(f's_and_b32 {s(sMt)}, {s(sT0)}, 1')
    p(f's_lshl_b32 {s(sMt)}, {s(sMt)}, 3')
    p(f's_and_b32 {s(sT2)}, {s(sT1)}, 7')
    p(f's_add_u32 {s(sMt)}, {s(sMt)}, {s(sT2)}')
    p(f's_lshr_b32 {s(sFt)}, {s(sT0)}, 1')
    p(f's_lshl_b32 {s(sFt)}, {s(sFt)}, 2')
    p(f's_lshr_b32 {s(sT2)}, {s(sT1)}, 3')
    p(f's_add_u32 {s(sFt)}, {s(sFt)}, {s(sT2)}')
    vDX = 6
    vDW = 8
    p(f'v_lshlrev_b32 {v(vDX)}, 4, {v(vLane)}')
    p(f's_lshl_b32 {s(sT0)}, {s(sW)}, 11')
    p(f'v_add_u32 {v(vDX)}, {s(sT0)}, {v(vDX)}')
    p(f's_and_b32 {s(sT0)}, {s(sW)}, 1')
    p(f's_mul_i32 {s(sT0)}, {s(sT0)}, 192')
    p(f's_mul_i32 {s(sT1)}, {s(sFt)}, 192')
    for i in range(3):
        p(f'v_add_u32 {v(vT0)}, {s(sT0)}, {v(vLane)}')
        if i:
            p(f'v_add_u32 {v(vT0)}, {64 * i}, {v(vT0)}')
        p(f'v_mul_u32_u24 {v(vT1)}, 43691, {v(vT0)}')
        p(f'v_lshrrev_b32 {v(vT1)}, 19, {v(vT1)}')
        p(f'v_mul_u32_u24 {v(vT2)}, 12, {v(vT1)}')
        p(f'v_sub_u32 {v(vT0)}, {v(vT0)}, {v(vT2)}')
        p(f'v_bfe_u32 {v(vT2)}, {v(vT1)}, 2, 1')
        p(f'v_lshlrev_b32 {v(vT2)}, 1, {v(vT2)}')
        p(f'v_xor_b32 {v(vT0)}, {v(vT0)}, {v(vT2)}')
        p(f'v_bfe_u32 {v(vT2)}, {v(vT1)}, 2, 2')
        p(f'v_lshlrev_b32 {v(vT2)}, 3, {v(vT2)}')
        p(f'v_and_b32 {v(vT3)}, 3, {v(vT1)}')
        p(f'v_add_u32 {v(vT2)}, {v(vT2)}, {v(vT3)}')
        p(f'v_lshrrev_b32 {v(vT3)}, 4, {v(vT1)}')
        p(f'v_lshl_add_u32 {v(vT2)}, {v(vT3)}, 2, {v(vT2)}')
        p(f'v_mul_u32_u24 {v(vT2)}, 3072, {v(vT2)}')
        p(f'v_lshl_add_u32 {v(vT2)}, {v(vT0)}, 4, {v(vT2)}')
        p(f'v_add_u32 {v(vDW + i)}, {s(sT1)}, {v(vT2)}')
        if i:
            p(f'v_subrev_u32 {v(vDW + i)}, {1024 * i}, {v(vDW + i)}')
    p(f's_lshl_b32 {s(sM0x)}, {s(sW)}, 11')
    p(f's_lshr_b32 {s(sT0)}, {s(sW)}, 1')
    p(f's_mul_i32 {s(sT0)}, {s(sT0)}, 6144')
    p(f's_and_b32 {s(sT1)}, {s(sW)}, 1')
    p(f's_mul_i32 {s(sT1)}, {s(sT1)}, 3072')
    p(f's_add_u32 {s(sM0w)}, {s(sT0)}, {s(sT1)}')
    p(f's_add_u32 {s(sM0w)}, {s(sM0w)}, 8192')
    p('s_waitcnt lgkmcnt(0)')
    srd(p, SRD_XN, sWS, XN_OFF, XN_BYTES)
    srd(p, SRD_H, sWS, H_OFF, H_BYTES)
    p(f's_cmp_ge_u32 {s(sW)}, 2')
    p(f's_cselect_b32 {s(SRD_W)}, {s(sW3)}, {s(sW1)}')
    p(f's_cselect_b32 {s(SRD_W + 1)}, {s(sW3 + 1)}, {s(sW1 + 1)}')
    p(f's_mov_b32 {s(SRD_W + 2)}, {W13_BYTES}')
    p(f's_mov_b32 {s(SRD_W + 3)}, 0x00020000')
    p(f's_mul_i32 {s(sKx)}, {s(sMt)}, {20 * 8192}')
    p(f's_mov_b32 {s(sKw)}, 0')

    def dma(stage):
        out = [f's_add_u32 m0, {s(sM0x)}, {stage * STAGE}']
        for i in range(2):
            out.append(f'buffer_load_dwordx4 {v(vDX)}, {s(SRD_XN, 4)}, {s(sKx)} offen offset:{1024 * i} lds')
        out.append(f's_add_u32 m0, {s(sM0w)}, {stage * STAGE}')
        for i in range(3):
            out.append(f'buffer_load_dwordx4 {v(vDW + i)}, {s(SRD_W, 4)}, {s(sKw)} offen offset:{1024 * i} lds')
        out.append(f's_add_u32 {s(sKx)}, {s(sKx)}, 8192')
        out.append(f's_add_u32 {s(sKw)}, {s(sKw)}, {32 * 3072}')
        return out

    for st in range(4):
        for ins in dma(st):
            p(ins)
    vN, vQ = 11, 12
    vBA = 13
    vAA = 14
    sWm, sWn = 35, 36
    p(f's_and_b32 {s(sWm)}, {s(sW)}, 1')
    p(f's_lshr_b32 {s(sWn)}, {s(sW)}, 1')
    p(f'v_and_b32 {v(vN)}, 15, {v(vLane)}')
    p(f'v_lshrrev_b32 {v(vQ)}, 4, {v(vLane)}')
    p(f'v_lshrrev_b32 {v(vT0)}, 2, {v(vN)}')
    p(f'v_sub_u32 {v(vT0)}, 0, {v(vT0)}')
    p(f'v_xor_b32 {v(vT0)}, {v(vT0)}, {v(vQ)}')
    p(f'v_and_b32 {v(vT0)}, 3, {v(vT0)}')
    p(f'v_lshlrev_b32 {v(vT0)}, 4, {v(vT0)}')
    p(f's_lshl_b32 {s(sT0)}, {s(sWm)}, 12')
    p(f'v_lshl_add_u32 {v(vT0)}, {v(vN)}, 6, {v(vT0)}')
    p(f'v_add_u32 {v(vBA)}, {s(sT0)}, {v(vT0)}')
    p(f'v_lshrrev_b32 {v(vT0)}, 2, {v(vN)}')
    p(f'v_lshl_add_u32 {v(vT0)}, {v(vQ)}, 2, {v(vT0)}')
    p(f'v_mul_u32_u24 {v(vT0)}, 192, {v(vT0)}')
    p(f'v_and_b32 {v(vT1)}, 3, {v(vN)}')
    p(f'v_lshl_add_u32 {v(vT0)}, {v(vT1)}, 3, {v(vT0)}')
    p(f'v_add_u32 {v(vT0)}, 8192, {v(vT0)}')
    p(f'v_and_b32 {v(vT1)}, 1, {v(vQ)}')
    p(f's_mul_i32 {s(sT0)}, {s(sWn)}, 3')
    for e in range(3):
        p(f's_add_u32 {s(sT1)}, {s(sT0)}, {e}')
        p(f'v_xor_b32 {v(vT2)}, {s(sT1)}, {v(vT1)}')
        p(f'v_lshl_add_u32 {v(vAA + e)}, {v(vT2)}, 5, {v(vT0)}')
        p(f'v_add_u32 {v(vAA + 3 + e)}, {2 * STAGE}, {v(vAA + e)}')

    FA = [64, 104]
    FB = [88, 128]
    ACC = 160

    def reads(step):
        st, fs = step % 4, step % 2
        out = []
        for img in range(2):
            for e in range(3):
                a = vAA + (3 if st >= 2 else 0) + e
                off = (st % 2) * STAGE + img * 6144
                d = FA[fs] + (img * 3 + e) * 4
                out.append(f'ds_read_b64_tr_b16 {v(d, 2)}, {v(a)} offset:{off}')
                out.append(f'ds_read_b64_tr_b16 {v(d + 2, 2)}, {v(a)} offset:{off + 3072}')
        bl = []
        for nt in range(4):
            bl.append(f'ds_read_b128 {v(FB[fs] + 4 * nt, 4)}, {v(vBA)} offset:{st * STAGE + nt * 1024}')
        return bl[:2] + out[:4] + bl[2:] + out[4:]

    def mfmas(step, first):
        fs = step % 2
        out = []
        for nt in range(4):
            for ie in range(6):
                acc = ACC + (ie * 4 + nt) * 4
                c = '0' if first else v(acc, 4)
                out.append(f'v_mfma_f32_16x16x32_bf16 {v(acc, 4)}, {v(FA[fs] + 4 * ie, 4)}, {v(FB[fs] + 4 * nt, 4)}, {c}')
        return out

    def interleave(m, others):
        res = []
        oi = 0
        for k, ins in enumerate(m):
            res.append(ins)
            if oi < len(others):
                res.append(others[oi])
                oi += 1
        res += others[oi:]
        return res

    stamp(p, 2)
    p('s_waitcnt vmcnt(15)')
    stamp(p, 3)
    p('s_barrier')
    for ins in reads(0):
        p(ins)
    p('s_waitcnt lgkmcnt(0)')

    def step(k, slot, first, do_dma, vm, has_next):
        if has_next:
            p(f's_waitcnt vmcnt({vm})')
            p('s_barrier')
        others = []
        if has_next:
            others += reads(k + 1)
        if do_dma:
            others += dma(slot)
        for ins in interleave(mfmas(k, first), others):
            p(ins)
        if has_next:
            p('s_waitcnt lgkmcnt(0)')

    for k in range(4):
        step(k, k, k == 0, True, 10, True)
    stamp(p, 4)
    p(f's_mov_b32 {s(sCnt)}, 3')
    p.loop_begin('K2_GLOOP')
    for k in range(4, 8):
        step(k, k % 4, False, True, 10, True)
    p(f's_sub_u32 {s(sCnt)}, {s(sCnt)}, 1')
    p(f's_cmp_lg_u32 {s(sCnt)}, 0')
    p('s_cbranch_scc1 K2_GLOOP')
    p.loop_end()
    stamp(p, 5)
    step(16, 0, False, False, 10, True)
    step(17, 1, False, False, 5, True)
    step(18, 2, False, False, 0, True)
    step(19, 3, False, False, 0, False)

    stamp(p, 6)
    vOff = 20
    p(f'v_lshrrev_b32 {v(vT0)}, 1, {v(vQ)}')
    p(f'v_lshl_add_u32 {v(vT0)}, {v(vT0)}, 4, {v(vN)}')
    p(f'v_lshlrev_b32 {v(vT0)}, 4, {v(vT0)}')
    p(f'v_and_b32 {v(vT1)}, 1, {v(vQ)}')
    p(f'v_lshl_add_u32 {v(vOff)}, {v(vT1)}, 3, {v(vT0)}')
    p(f's_lshl_b32 {s(sT0)}, {s(sMt)}, 1')
    p(f's_add_u32 {s(sT0)}, {s(sT0)}, {s(sWm)}')
    p(f's_mul_i32 {s(sT0)}, {s(sT0)}, {48 * 4096}')
    p(f's_mul_i32 {s(sT1)}, {s(sFt)}, 6')
    p(f's_mul_i32 {s(sT2)}, {s(sWn)}, 3')
    p(f's_add_u32 {s(sT1)}, {s(sT1)}, {s(sT2)}')
    for e in range(3):
        p(f's_add_u32 {s(sT2)}, {s(sT1)}, {e}')
        p(f's_lshr_b32 {s(40 + e)}, {s(sT2)}, 1')
        p(f's_lshl_b32 {s(40 + e)}, {s(40 + e)}, 12')
        p(f's_and_b32 {s(sT2)}, {s(sT2)}, 1')
        p(f's_lshl_b32 {s(sT2)}, {s(sT2)}, 9')
        p(f's_add_u32 {s(40 + e)}, {s(40 + e)}, {s(sT2)}')
        p(f's_add_u32 {s(40 + e)}, {s(40 + e)}, {s(sT0)}')
    vMask, vL2, vOne = 21, 22, 24
    p(f'v_mov_b32 {v(vMask)}, 0xffff0000')
    p(f'v_mov_b32 {v(vL2)}, {flit(-LOG2E)}')
    p(f'v_mov_b32 {v(vOne)}, 1.0')
    tb = 64
    cnt = 0
    for nt in range(4):
        for e in range(3):
            g = ACC + (e * 4 + nt) * 4
            u = ACC + ((3 + e) * 4 + nt) * 4
            o = tb + 16 * (cnt % 4) + 12
            for hh in range(2):
                t = tb + 16 * (cnt % 4) + 6 * hh
                G, E = t, t + 2
                p(f'v_cvt_pk_bf16_f32 {v(t + 4)}, {v(g + 2 * hh)}, {v(g + 2 * hh + 1)}')
                p(f'v_cvt_pk_bf16_f32 {v(t + 5)}, {v(u + 2 * hh)}, {v(u + 2 * hh + 1)}')
                p(f'v_lshlrev_b32 {v(G)}, 16, {v(t + 4)}')
                p(f'v_and_b32 {v(G + 1)}, {v(vMask)}, {v(t + 4)}')
                p(f'v_pk_mul_f32 {v(E, 2)}, {v(G, 2)}, {v(vL2, 2)} op_sel_hi:[1,0]')
                p(f'v_exp_f32 {v(E)}, {v(E)}')
                p(f'v_exp_f32 {v(E + 1)}, {v(E + 1)}')
                p(f'v_pk_add_f32 {v(E, 2)}, {v(E, 2)}, {v(vOne, 2)} op_sel_hi:[1,0]')
                p(f'v_rcp_f32 {v(E)}, {v(E)}')
                p(f'v_rcp_f32 {v(E + 1)}, {v(E + 1)}')
                p(f'v_pk_mul_f32 {v(G, 2)}, {v(G, 2)}, {v(E, 2)}')
                p(f'v_cvt_pk_bf16_f32 {v(t + 4)}, {v(G)}, {v(G + 1)}')
                p(f'v_lshlrev_b32 {v(G)}, 16, {v(t + 4)}')
                p(f'v_and_b32 {v(G + 1)}, {v(vMask)}, {v(t + 4)}')
                p(f'v_lshlrev_b32 {v(E)}, 16, {v(t + 5)}')
                p(f'v_and_b32 {v(E + 1)}, {v(vMask)}, {v(t + 5)}')
                p(f'v_pk_mul_f32 {v(G, 2)}, {v(G, 2)}, {v(E, 2)}')
                p(f'v_cvt_pk_bf16_f32 {v(o + hh)}, {v(G)}, {v(G + 1)}')
            p(f'buffer_store_dwordx2 {v(o, 2)}, {v(vOff)}, {s(SRD_H, 4)}, {s(40 + e)} offen offset:{1024 * nt}')
            cnt += 1
    stamp(p, 7)
    p('s_waitcnt vmcnt(0)')
    stamp(p, 8)
    stamp(p, 9, True)
    diag_dump(p, 1, sW)
    p('s_endpgm')


def gen_fft(p, L):
    sWr, sWi, sWS, sW, sT0, sT1, sT2 = (L[k] for k in ('sWr', 'sWi', 'sWS', 'sW', 'sT0', 'sT1', 'sT2'))
    vLane, vT0, vT1, vT2, vT3 = (L[k] for k in ('vLane', 'vT0', 'vT1', 'vT2', 'vT3'))
    SRD_T, SRD_U, SRD_WR, SRD_WI = 16, 20, 24, 28
    sTB = 32
    sG, sKa, sCt, sSpec, sOff, sLds = 34, 35, 36, 37, 38, 39
    EC, ES = 128, 160
    B, Bp = 32, 48
    X, U = 64, 96
    WR, WI = 192, 224
    vN, vH, vKaF, vWoff, vUoff, vTr, vMo, vMe, vKa = 6, 7, 8, 9, 10, 11, 12, 13, 14
    stamp(p, 0, True)
    stamp(p, 1)
    p(f's_getpc_b64 {s(sTB, 2)}')
    p(f's_add_u32 {s(sTB)}, {s(sTB)}, TBL_E64@rel32@lo+4')
    p(f's_addc_u32 {s(sTB + 1)}, {s(sTB + 1)}, TBL_E64@rel32@hi+12')
    p(f's_sub_u32 {s(sG)}, s2, {NGEMM}')
    p(f's_cmp_eq_u32 {s(sG)}, {NFFT}')
    p(f's_cselect_b32 {s(sSpec)}, 1, 0')
    p(f'v_and_b32 {v(vN)}, 31, {v(vLane)}')
    p(f'v_mov_b32 {v(vUoff)}, 0')
    p(f'v_mov_b32 {v(vWoff)}, 0')
    p(f'v_lshrrev_b32 {v(vH)}, 5, {v(vLane)}')
    p(f's_lshl_b32 {s(sLds)}, {s(sW)}, 12')
    p('s_waitcnt lgkmcnt(0)')
    srd(p, SRD_T, sWS, T_OFF, T_BYTES)
    srd(p, SRD_U, sWS, U_OFF, U_BYTES)
    srd(p, SRD_WR, sWr, 0, W_BYTES)
    srd(p, SRD_WI, sWi, 0, W_BYTES)
    p(f'v_and_b32 {v(vT0)}, 1, {v(vLane)}')
    p(f'v_mov_b32 {v(vT1)}, 0x80008000')
    p(f'v_mul_lo_u32 {v(vMo)}, {v(vT0)}, {v(vT1)}')
    p(f'v_xor_b32 {v(vMe)}, {v(vMo)}, {v(vT1)}')
    p(f's_cmp_eq_u32 {s(sSpec)}, 1')
    p('s_cbranch_scc1 K2_SPEC_LOAD')
    p(f's_and_b32 {s(sKa)}, {s(sG)}, 31')
    p(f's_lshr_b32 {s(sCt)}, {s(sG)}, 5')
    p(f's_lshl_b32 {s(sCt)}, {s(sCt)}, 2')
    p(f's_add_u32 {s(sCt)}, {s(sCt)}, {s(sW)}')
    p(f'v_mov_b32 {v(vKa)}, {s(sKa)}')
    p(f'v_lshlrev_b32 {v(vT0)}, 4, {v(vLane)}')
    p(f's_mul_i32 {s(sT0)}, {s(sKa)}, 20')
    p(f's_add_u32 {s(sT0)}, {s(sT0)}, {s(sCt)}')
    p(f's_lshl_b32 {s(sT0)}, {s(sT0)}, 12')
    p(f's_mov_b32 m0, {s(sLds)}')
    for i in range(4):
        p(f'buffer_load_dwordx4 {v(vT0)}, {s(SRD_T, 4)}, {s(sT0)} offen offset:{1024 * i} lds')
    p(f'v_lshlrev_b32 {v(vT0)}, 7, {v(vH)}')
    p(f'v_add_u32 {v(vT0)}, {s(sKa)}, {v(vT0)}')
    p(f'v_mul_u32_u24 {v(vWoff)}, 642, {v(vT0)}')
    p(f'v_and_b32 {v(vT1)}, 30, {v(vN)}')
    p(f's_lshl_b32 {s(sT1)}, {s(sCt)}, 5')
    p(f'v_add3_u32 {v(vWoff)}, {v(vWoff)}, {v(vT1)}, {s(sT1)}')
    p(f's_mul_hi_u32 {s(sT0)}, {s(sCt)}, 0x33333334')
    p(f's_mul_i32 {s(sT1)}, {s(sT0)}, 5')
    p(f's_sub_u32 {s(sT1)}, {s(sCt)}, {s(sT1)}')
    p(f's_mul_i32 {s(sT0)}, {s(sT0)}, 20480')
    p(f's_lshl_b32 {s(sT1)}, {s(sT1)}, 6')
    p(f's_add_u32 {s(sT0)}, {s(sT0)}, {s(sT1)}')
    p(f's_mul_i32 {s(sT1)}, {s(sKa)}, 320')
    p(f's_add_u32 {s(sT0)}, {s(sT0)}, {s(sT1)}')
    p(f's_bfe_u32 {s(sT1)}, {s(sKa)}, 0x10002')
    p(f's_lshl_b32 {s(sT1)}, {s(sT1)}, 5')
    p(f'v_lshlrev_b32 {v(vT0)}, 1, {v(vN)}')
    p(f'v_xor_b32 {v(vT0)}, {s(sT1)}, {v(vT0)}')
    p(f'v_mul_u32_u24 {v(vT1)}, {2 * 81920}, {v(vH)}')
    p(f'v_add3_u32 {v(vUoff)}, {v(vT0)}, {v(vT1)}, {s(sT0)}')
    p('s_branch K2_LOADED')
    p.label('K2_SPEC_LOAD', pad=4)
    p(f's_cmp_ge_u32 {s(sW)}, 2')
    p('s_cbranch_scc1 K2_END')
    p(f's_lshl_b32 {s(sT1)}, {s(sW)}, 4')
    p(f'v_lshrrev_b32 {v(vKa)}, 1, {v(vN)}')
    p(f'v_add_u32 {v(vKa)}, {s(sT1)}, {v(vKa)}')
    p(f'v_and_b32 {v(vT0)}, 15, {v(vLane)}')
    p(f'v_add_u32 {v(vT0)}, {s(sT1)}, {v(vT0)}')
    p(f'v_mul_u32_u24 {v(vT0)}, 81920, {v(vT0)}')
    p(f'v_lshrrev_b32 {v(vT1)}, 4, {v(vLane)}')
    p(f'v_lshl_add_u32 {v(vT0)}, {v(vT1)}, 6, {v(vT0)}')
    p(f's_mov_b32 m0, {s(sLds)}')
    for i in range(16):
        p(f'buffer_load_dword {v(vT0)}, {s(SRD_T, 4)}, 0 offen offset:{256 * i} lds')
    p(f'v_and_b32 {v(vT1)}, 1, {v(vN)}')
    p(f'v_bfe_u32 {v(vT0)}, {v(vKa)}, 2, 1')
    p(f'v_lshlrev_b32 {v(vT0)}, 5, {v(vT0)}')
    p(f'v_lshl_add_u32 {v(vT0)}, {v(vT1)}, 1, {v(vT0)}')
    p(f'v_mul_u32_u24 {v(vT2)}, 320, {v(vKa)}')
    p(f'v_mul_u32_u24 {v(vT3)}, {2 * 81920}, {v(vH)}')
    p(f'v_add3_u32 {v(vUoff)}, {v(vT0)}, {v(vT2)}, {v(vT3)}')
    p(f'v_lshlrev_b32 {v(vT0)}, 7, {v(vH)}')
    p(f'v_add_u32 {v(vT0)}, {v(vKa)}, {v(vT0)}')
    p(f'v_lshlrev_b32 {v(vWoff)}, 3, {v(vT0)}')
    p(f'v_lshl_add_u32 {v(vWoff)}, {v(vT1)}, 2, {v(vWoff)}')
    p.label('K2_LOADED', pad=4)
    p(f'v_lshlrev_b32 {v(vT0)}, 4, {v(vLane)}')
    for g4 in range(4):
        if g4:
            p(f'v_add_u32 {v(vT0)}, 4096, {v(vT0)}')
        for f in range(4):
            p(f'global_load_dwordx4 {v(EC + (g4 * 4 + f) * 4, 4)}, {v(vT0)}, {s(sTB, 2)} offset:{1024 * f}')

    def wloads(mt):
        for r in range(16):
            row = 32 * mt + 8 * (r >> 2) + (r & 3)
            p(f's_mov_b32 {s(sOff)}, {row * 32 * 642}')
            p(f'buffer_load_short_d16_hi {v(WR + 16 * mt + r)}, {v(vWoff)}, {s(SRD_WR, 4)}, {s(sOff)} offen')
            p(f'buffer_load_ushort {v(WI + 16 * mt + r)}, {v(vWoff)}, {s(SRD_WI, 4)}, {s(sOff)} offen')
    for r in range(32):
        p(f'v_mov_b32 {v(WR + r)}, 0')
    p(f'v_bfe_u32 {v(vT0)}, {v(vLane)}, 2, 2')
    p(f'v_lshl_add_u32 {v(vT0)}, {v(vH)}, 2, {v(vT0)}')
    p(f'v_lshlrev_b32 {v(vT0)}, 6, {v(vT0)}')
    p(f'v_bfe_u32 {v(vT1)}, {v(vLane)}, 4, 1')
    p(f'v_lshl_add_u32 {v(vT0)}, {v(vT1)}, 5, {v(vT0)}')
    p(f'v_and_b32 {v(vT1)}, 3, {v(vLane)}')
    p(f'v_lshl_add_u32 {v(vT0)}, {v(vT1)}, 3, {v(vT0)}')
    p(f'v_add_u32 {v(vTr)}, {s(sLds)}, {v(vT0)}')
    p(f's_cmp_eq_u32 {s(sSpec)}, 1')
    p('s_cbranch_scc1 K2_NOW1')
    wloads(0)
    p('s_waitcnt vmcnt(32)')
    p('s_branch K2_W1DONE')
    p.label('K2_NOW1')
    p('s_waitcnt vmcnt(0)')
    p.label('K2_W1DONE')
    stamp(p, 2)
    for kk in range(4):
        p(f'ds_read_b64_tr_b16 {v(B + 4 * kk, 2)}, {v(vTr)} offset:{1024 * kk}')
        p(f'ds_read_b64_tr_b16 {v(B + 4 * kk + 2, 2)}, {v(vTr)} offset:{1024 * kk + 512}')
    p(f's_cmp_eq_u32 {s(sSpec)}, 1')
    p('s_cbranch_scc1 K2_NOW2')
    wloads(1)
    p.label('K2_NOW2')
    p('s_waitcnt lgkmcnt(0)')
    stamp(p, 3)
    for r in range(16):
        p(f'v_xor_b32_dpp {v(Bp + r)}, {v(B + r)}, {v(vMo)} {DPP_SWAP}')

    def dft(acc):
        for kk in range(4):
            for mt in range(2):
                c = '0' if kk == 0 else v(acc + 16 * mt, 16)
                p(f'v_mfma_f32_32x32x16_bf16 {v(acc + 16 * mt, 16)}, {v(EC + (mt * 4 + kk) * 4, 4)}, {v(B + 4 * kk, 4)}, {c}')
        for kk in range(4):
            for mt in range(2):
                p(f'v_mfma_f32_32x32x16_bf16 {v(acc + 16 * mt, 16)}, {v(ES + (mt * 4 + kk) * 4, 4)}, {v(Bp + 4 * kk, 4)}, {v(acc + 16 * mt, 16)}')
    dft(X)
    p(f's_cmp_eq_u32 {s(sSpec)}, 1')
    p('s_cbranch_scc1 K2_SPEC_MUL')
    vSg = 15
    p(f'v_and_b32 {v(vSg)}, 0x80000000, {v(vMe)}')
    for mt in range(2):
        p(f's_waitcnt vmcnt({32 if mt == 0 else 0})')
        for r in range(16):
            i = 16 * mt + r
            p(f'v_lshl_add_u32 {v(WI + i)}, {v(WI + i)}, 16, {v(vSg)}')
        for r in range(16):
            i = 16 * mt + r
            p(f'v_mul_f32 {v(U + i)}, {v(X + i)}, {v(WR + i)}')
        for r in range(16):
            i = 16 * mt + r
            p(f'v_fmac_f32_dpp {v(U + i)}, {v(X + i)}, {v(WI + i)} {DPP_SWAP}')
    p('s_branch K2_MULDONE')
    p.label('K2_SPEC_MUL', pad=12)
    XS = 16384
    for i in range(32):
        mt, r = i >> 4, i & 15
        p(f'ds_write_b32 {v(vWoff)}, {v(X + i)} offset:{XS + (32 * mt + 8 * (r >> 2) + (r & 3)) * 256}')
    SRD_C = SRD_WR
    srd(p, SRD_C, sWS, C_OFF, C_BYTES)
    p(f'v_lshlrev_b32 {v(vT0)}, 4, {v(vLane)}')
    p(f's_lshl_b32 {s(sOff)}, {s(sW)}, 15')
    p('s_waitcnt lgkmcnt(0)')
    p('s_barrier')
    vPa, vPp = 16, 17
    p(f'v_and_b32 {v(vPp)}, 4, {v(vWoff)}')
    p(f'v_sub_u32 {v(vPa)}, {v(vWoff)}, {v(vPp)}')
    for half in range(2):
        CO = WR
        for r in range(16):
            i = 16 * half + r
            p(f'buffer_load_dwordx4 {v(CO + 4 * r, 4)}, {v(vT0)}, {s(SRD_C, 4)}, {s(sOff)} offen')
            p(f's_add_u32 {s(sOff)}, {s(sOff)}, 1024')
            rowc = 32 * half + 8 * (r >> 2) + (r & 3)
            p(f'v_sub_u32 {v(18)}, {16384 - rowc * 256}, {v(vPa)}')
            p(f'v_and_b32 {v(18)}, 16383, {v(18)}')
            p(f'v_add_u32 {v(18)}, {v(18)}, {v(vPp)}')
            p(f'ds_read_b32 {v(B + r)}, {v(18)} offset:{XS}')
            if r == 7:
                p('s_waitcnt lgkmcnt(0)')
        p('s_waitcnt vmcnt(0) lgkmcnt(0)')
        for r in range(16):
            i = 16 * half + r
            p(f'v_mul_f32 {v(U + i)}, {v(X + i)}, {v(CO + 4 * r)}')
            p(f'v_fmac_f32_dpp {v(U + i)}, {v(X + i)}, {v(CO + 4 * r + 1)} {DPP_SWAP}')
            p(f'v_fmac_f32 {v(U + i)}, {v(B + r)}, {v(CO + 4 * r + 2)}')
            p(f'v_fmac_f32_dpp {v(U + i)}, {v(B + r)}, {v(CO + 4 * r + 3)} {DPP_SWAP}')
    p.label('K2_MULDONE', pad=4)
    stamp(p, 4)
    for r in range(16):
        p(f'v_cvt_pk_bf16_f32 {v(B + r)}, {v(U + 2 * r)}, {v(U + 2 * r + 1)}')
    for r in range(16):
        p(f'v_xor_b32_dpp {v(Bp + r)}, {v(B + r)}, {v(vMe)} {DPP_SWAP}')
    dft(X)
    vBase, vHB = 16, 17
    p(f'v_cvt_f32_u32 {v(vBase)}, {v(vKa)}')
    p(f'v_mul_f32 {v(vBase)}, {flit(1.0 / 2048.0)}, {v(vBase)}')
    p(f'v_and_b32 {v(vT0)}, 0x80000000, {v(vMe)}')
    p(f'v_xor_b32 {v(vBase)}, {v(vBase)}, {v(vT0)}')
    p(f'v_lshlrev_b32 {v(vT0)}, 2, {v(vH)}')
    p(f'v_cvt_f32_u32 {v(vT0)}, {v(vT0)}')
    p(f'v_mul_f32 {v(vHB)}, {v(vT0)}, {v(vBase)}')
    for i in range(32):
        mt, r = i >> 4, i & 15
        row = 32 * mt + 8 * (r >> 2) + (r & 3)
        p(f'v_fmamk_f32 {v(WI + i)}, {v(vBase)}, {flit(float(row))}, {v(vHB)}')
        p(f'v_cos_f32 {v(WR + i)}, {v(WI + i)}')
        p(f'v_sin_f32 {v(WI + i)}, {v(WI + i)}')
    for i in range(32):
        p(f'v_mul_f32 {v(U + i)}, {v(X + i)}, {v(WR + i)}')
    for i in range(32):
        p(f'v_fmac_f32_dpp {v(U + i)}, {v(X + i)}, {v(WI + i)} {DPP_SWAP}')
    for r in range(16):
        p(f'v_cvt_pk_bf16_f32 {v(B + r)}, {v(U + 2 * r)}, {v(U + 2 * r + 1)}')
    p(f's_cmp_eq_u32 {s(sSpec)}, 1')
    p('s_cbranch_scc1 K2_STORE')
    p(f's_cmp_lg_u32 {s(sCt)}, 0')
    p('s_cbranch_scc1 K2_STORE')
    p(f'v_cmp_le_u32 vcc, 2, {v(vN)}')
    p('s_and_b64 exec, exec, vcc')
    p.label('K2_STORE', pad=2)
    stamp(p, 5)
    for i in range(32):
        mt, r = i >> 4, i & 15
        row = 32 * mt + 8 * (r >> 2) + (r & 3)
        p(f's_mov_b32 {s(sOff)}, {(row >> 1) * 81920 + (row & 1) * 10240}')
        if i % 2 == 0:
            p(f'buffer_store_short {v(B + i // 2)}, {v(vUoff)}, {s(SRD_U, 4)}, {s(sOff)} offen')
        else:
            p(f'buffer_store_short_d16_hi {v(B + i // 2)}, {v(vUoff)}, {s(SRD_U, 4)}, {s(sOff)} offen')
    stamp(p, 7)
    p('s_waitcnt vmcnt(0)')
    stamp(p, 8)
    stamp(p, 9, True)
    diag_dump(p, 1, sW)
    p('s_endpgm')


def gen_retile(p, L):
    sWS, sW, sT0, sT1, sT2 = (L[k] for k in ('sWS', 'sW', 'sT0', 'sT1', 'sT2'))
    vLane, vT0, vT1, vT2, vT3 = (L[k] for k in ('vLane', 'vT0', 'vT1', 'vT2', 'vT3'))
    SRD_S, SRD_D = 16, 20
    sR, sSrc, sM = 28, 29, 30
    p('s_load_dwordx2 s[24:25], s[0:1], 48')
    p(f's_sub_u32 {s(sR)}, s2, {NGEMM + NFFT + 1}')
    p(f's_mul_i32 {s(sSrc)}, {s(sR)}, 40960')
    p(f's_mul_i32 {s(sM)}, {s(sW)}, 10240')
    p(f's_add_u32 {s(sSrc)}, {s(sSrc)}, {s(sM)}')
    p(f'v_lshlrev_b32 {v(vT0)}, 4, {v(vLane)}')
    p('s_waitcnt lgkmcnt(0)')
    srd(p, SRD_S, 24, 0, W2_BYTES)
    srd(p, SRD_D, sWS, W2F_OFF, W2F_BYTES)
    for g in range(3):
        p(f's_mov_b32 m0, {s(sM)}')
        for i in range(4 if g < 2 else 2):
            p(f'buffer_load_dwordx4 {v(vT0)}, {s(SRD_S, 4)}, {s(sSrc)} offen offset:{1024 * i} lds')
        p(f's_add_u32 {s(sM)}, {s(sM)}, 4096')
        p(f's_add_u32 {s(sSrc)}, {s(sSrc)}, 4096')
    p(f'v_bfe_u32 {v(vT1)}, {v(vLane)}, 2, 2')
    p(f'v_lshrrev_b32 {v(vT2)}, 4, {v(vLane)}')
    p(f'v_lshl_add_u32 {v(vT1)}, {v(vT2)}, 3, {v(vT1)}')
    p(f'v_mul_u32_u24 {v(vT1)}, 1280, {v(vT1)}')
    p(f'v_and_b32 {v(vT2)}, 3, {v(vLane)}')
    p(f'v_lshl_add_u32 {v(vT1)}, {v(vT2)}, 3, {v(vT1)}')
    p(f's_mul_i32 {s(sT0)}, {s(sW)}, 320')
    p(f'v_add_u32 {v(vT1)}, {s(sT0)}, {v(vT1)}')
    p('s_waitcnt vmcnt(0)')
    p('s_barrier')
    for j in range(10):
        p(f'ds_read_b64_tr_b16 {v(16 + 4 * j, 2)}, {v(vT1)} offset:{32 * j}')
        p(f'ds_read_b64_tr_b16 {v(18 + 4 * j, 2)}, {v(vT1)} offset:{32 * j + 4 * 1280}')
        if j == 5:
            p('s_waitcnt lgkmcnt(4)')
    p(f's_lshl_b32 {s(sT0)}, {s(sW)}, 1')
    p(f's_mul_i32 {s(sT0)}, {s(sT0)}, 48')
    p(f's_add_u32 {s(sT0)}, {s(sT0)}, {s(sR)}')
    p(f's_mul_i32 {s(sT0)}, {s(sT0)}, 5120')
    p('s_waitcnt lgkmcnt(0)')
    for j in range(10):
        if j == 4:
            p(f's_add_u32 {s(sT1)}, {s(sT0)}, 4096')
        if j == 5:
            p(f's_add_u32 {s(sT0)}, {s(sT0)}, {48 * 5120}')
        if j == 9:
            p(f's_add_u32 {s(sT1)}, {s(sT0)}, 4096')
        if j % 5 == 4:
            p(f'buffer_store_dwordx4 {v(16 + 4 * j, 4)}, {v(vT0)}, {s(SRD_D, 4)}, {s(sT1)} offen')
        else:
            p(f'buffer_store_dwordx4 {v(16 + 4 * j, 4)}, {v(vT0)}, {s(SRD_D, 4)}, {s(sT0)} offen offset:{1024 * (j % 5)}')
    p('s_endpgm')
```

```python
from asmlib import *
from common import *
import os

K3_GRID = 256
SLAB = 20480
RING0 = 4 * SLAB
LOG2E = 1.4426950408889634
EXP = os.environ.get('EXP', '')
G2D = 7
DFD = 12


def a(n, c=1):
    return f'a{n}' if c == 1 else f'a[{n}:{n + c - 1}]'


def interleave(m, others):
    res = []
    oi = 0
    for ins in m:
        res.append(ins)
        if oi < len(others):
            res.append(others[oi])
            oi += 1
    res += others[oi:]
    return res


def gen_k3(p):
    name = 'k3_kernel'
    p.raw(f'.globl {name}\n.p2align 8\n.type {name},@function\n{name}:')
    sX, sWS, sOut = 4, 6, 8
    sW, sT0, sT1, sT2 = 12, 13, 14, 15
    SRD_X, SRD_A, SRD_OUT, SRD_U, SRD_H = 16, 20, 24, 28, 32
    sTB = 40
    sMg, sNs, sSlab, sRing, sKa, sKh, sUo, sM = 42, 43, 44, 45, 46, 47, 49, 50
    p(f's_cmp_ge_u32 s2, {K3_GRID}')
    p('s_cbranch_scc1 K3_END')
    p(f's_load_dwordx2 {s(sWS, 2)}, s[0:1], 72')
    p(f's_load_dwordx2 {s(sX, 2)}, s[0:1], 0')
    p(f's_load_dwordx2 {s(sOut, 2)}, s[0:1], 56')
    vLane, vT0, vT1, vT2, vT3 = 1, 2, 3, 4, 5
    vN, vQ, vG, vL16 = 6, 7, 8, 9
    p(f'v_lshrrev_b32 {v(vT0)}, 6, v0')
    p(f'v_and_b32 {v(vLane)}, 63, v0')
    p(f'v_readfirstlane_b32 {s(sW)}, {v(vT0)}')
    stamp(p, 0, True)
    stamp(p, 1)
    p(f'v_lshlrev_b32 {v(vL16)}, 4, {v(vLane)}')
    p(f's_and_b32 {s(sT0)}, s2, 7')
    p(f's_lshr_b32 {s(sT1)}, s2, 3')
    p(f's_lshl_b32 {s(sMg)}, {s(sT0)}, 2')
    p(f's_and_b32 {s(sT2)}, {s(sT1)}, 3')
    p(f's_add_u32 {s(sMg)}, {s(sMg)}, {s(sT2)}')
    p(f's_lshr_b32 {s(sNs)}, {s(sT1)}, 2')
    p(f's_mul_i32 {s(sSlab)}, {s(sW)}, {SLAB}')
    p(f's_add_u32 {s(sRing)}, {s(sSlab)}, {RING0}')
    p(f's_mul_i32 {s(sUo)}, {s(sMg)}, {4 * SLAB}')
    p(f's_add_u32 {s(sUo)}, {s(sUo)}, {s(sSlab)}')
    p(f's_mov_b32 {s(sM)}, {s(sSlab)}')
    p(f's_getpc_b64 {s(sTB, 2)}')
    p(f's_add_u32 {s(sTB)}, {s(sTB)}, TBL_E32I@rel32@lo+4')
    p(f's_addc_u32 {s(sTB + 1)}, {s(sTB + 1)}, TBL_E32I@rel32@hi+12')
    p('s_waitcnt lgkmcnt(0)')
    srd(p, SRD_U, sWS, U_OFF, U_BYTES)
    for g in range(5):
        p(f's_mov_b32 m0, {s(sM)}')
        for i in range(4):
            p(f'buffer_load_dwordx4 {v(vL16)}, {s(SRD_U, 4)}, {s(sUo)} offen offset:{1024 * i} lds')
        if g < 4:
            p(f's_add_u32 {s(sM)}, {s(sM)}, 4096')
            p(f's_add_u32 {s(sUo)}, {s(sUo)}, 4096')
    ACC = 176
    UA, EI, PQ, ZO = 176, 216, 232, 248
    for f in range(4):
        p(f'global_load_dwordx4 {v(EI + 4 * f, 4)}, {v(vL16)}, {s(sTB, 2)} offset:{1024 * f}')
    srd(p, SRD_H, sWS, H_OFF, H_BYTES)
    p(f's_mov_b32 {s(sT0)}, {W2F_OFF}')
    p(f's_mov_b32 {s(SRD_A + 2)}, {W2F_BYTES}')
    p(f's_cmp_eq_u32 {s(sW)}, 3')
    p(f's_cselect_b32 {s(sT0)}, {G_OFF}, {s(sT0)}')
    p(f's_cselect_b32 {s(SRD_A + 2)}, {G_BYTES}, {s(SRD_A + 2)}')
    p(f's_add_u32 {s(SRD_A)}, {s(sWS)}, {s(sT0)}')
    p(f's_addc_u32 {s(SRD_A + 1)}, {s(sWS + 1)}, 0')
    p(f's_mov_b32 {s(SRD_A + 3)}, 0x00020000')
    p(f's_cmp_eq_u32 {s(sW)}, 3')
    p('s_cbranch_scc1 K3_DFT_PRE')
    p(f's_lshl_b32 {s(sT0)}, {s(sW)}, 4')
    p(f's_mul_i32 {s(sKa)}, {s(sNs)}, 48')
    p(f's_add_u32 {s(sKa)}, {s(sKa)}, {s(sT0)}')
    p(f's_mul_i32 {s(sKa)}, {s(sKa)}, 5120')
    p(f's_mul_i32 {s(sKh)}, {s(sMg)}, 48')
    p(f's_add_u32 {s(sKh)}, {s(sKh)}, {s(sT0)}')
    p(f's_lshl_b32 {s(sKh)}, {s(sKh)}, 12')

    def a_loads(base):
        out = []
        for mt in range(4):
            out.append(f'buffer_load_dwordx4 {a(base + 4 * mt, 4)}, {v(vL16)}, {s(SRD_A, 4)}, {s(sKa)} offen offset:{1024 * mt}')
        out.append(f's_add_u32 {s(sKa)}, {s(sKa)}, 4096')
        out.append(f'buffer_load_dwordx4 {a(base + 16, 4)}, {v(vL16)}, {s(SRD_A, 4)}, {s(sKa)} offen')
        out.append(f's_add_u32 {s(sKa)}, {s(sKa)}, 1024')
        return out

    def g2_loads(step):
        base = 36 * (step % G2D)
        out = a_loads(base)
        for nt in range(4):
            out.append(f'buffer_load_dwordx4 {a(base + 20 + 4 * nt, 4)}, {v(vL16)}, {s(SRD_H, 4)}, {s(sKh)} offen offset:{1024 * nt}')
        out.append(f's_add_u32 {s(sKh)}, {s(sKh)}, 4096')
        return out

    def d_loads(kk):
        return a_loads(20 * (kk % DFD))

    for st in range(4):
        for ins in g2_loads(st):
            p(ins)
    p('s_branch K3_I2')
    p.label('K3_DFT_PRE', pad=4)
    p(f's_mul_i32 {s(sKa)}, {s(sNs)}, {100 * 1024}')
    for st in range(7):
        for ins in d_loads(st):
            p(ins)

    p.label('K3_I2', pad=4)
    srd(p, SRD_X, sX, 0, XN_BYTES)
    srd(p, SRD_OUT, sOut, 0, XN_BYTES)
    p(f'v_and_b32 {v(vN)}, 15, {v(vLane)}')
    p(f'v_lshrrev_b32 {v(vQ)}, 4, {v(vLane)}')
    p(f'v_lshrrev_b32 {v(vG)}, 2, {v(vN)}')
    p(f'v_sub_u32 {v(vG)}, 0, {v(vG)}')
    p(f'v_and_b32 {v(vG)}, 3, {v(vG)}')
    vZA = 27
    p(f'v_xor_b32 {v(vT0)}, {v(vQ)}, {v(vG)}')
    p(f'v_mul_u32_u24 {v(vT1)}, 320, {v(vN)}')
    p(f'v_lshl_add_u32 {v(vZA)}, {v(vT0)}, 4, {v(vT1)}')
    p(f'v_add_u32 {v(vZA + 1)}, {2 * SLAB}, {v(vZA)}')
    vUe, vUo_, vZe, vZo = 30, 31, 32, 33
    p(f'v_lshrrev_b32 {v(vT0)}, 2, {v(vN)}')
    p(f'v_lshl_add_u32 {v(vT0)}, {v(vQ)}, 2, {v(vT0)}')
    p(f'v_mul_u32_u24 {v(vT0)}, 320, {v(vT0)}')
    p(f'v_and_b32 {v(vT1)}, 3, {v(vN)}')
    p(f'v_lshl_add_u32 {v(vT0)}, {v(vT1)}, 3, {v(vT0)}')
    p(f'v_add_u32 {v(vT0)}, {s(sSlab)}, {v(vT0)}')
    p(f'v_and_b32 {v(vT1)}, 1, {v(vQ)}')
    p(f'v_lshlrev_b32 {v(vT1)}, 5, {v(vT1)}')
    p(f'v_add_u32 {v(vUe)}, {v(vT0)}, {v(vT1)}')
    p(f'v_sub_u32 {v(vUo_)}, {v(vT0)}, {v(vT1)}')
    p(f'v_mul_u32_u24 {v(vT0)}, 320, {v(vN)}')
    p(f'v_and_b32 {v(vT1)}, 1, {v(vQ)}')
    p(f'v_lshl_add_u32 {v(vT0)}, {v(vT1)}, 3, {v(vT0)}')
    p(f'v_add_u32 {v(vT0)}, {s(sSlab)}, {v(vT0)}')
    p(f'v_lshrrev_b32 {v(vT1)}, 1, {v(vQ)}')
    p(f'v_xor_b32 {v(vT1)}, {v(vT1)}, {v(vG)}')
    p(f'v_lshl_add_u32 {v(vZe)}, {v(vT1)}, 4, {v(vT0)}')
    p(f'v_xor_b32 {v(vT1)}, 2, {v(vT1)}')
    p(f'v_lshl_add_u32 {v(vZo)}, {v(vT1)}, 4, {v(vT0)}')
    vXo = 34
    XR = 56
    p(f's_and_b32 {s(sT0)}, {s(sW)}, 1')
    p(f's_lshl_b32 {s(sT0)}, {s(sT0)}, 10')
    p(f's_lshr_b32 {s(sT1)}, {s(sW)}, 1')
    p(f's_add_u32 {s(sT0)}, {s(sT0)}, {s(sT1)}')
    p(f's_lshl_b32 {s(sT1)}, {s(sMg)}, 1')
    p(f's_add_u32 {s(sT0)}, {s(sT0)}, {s(sT1)}')
    p(f'v_lshlrev_b32 {v(vT0)}, 6, {v(vN)}')
    p(f'v_add_u32 {v(vT0)}, {s(sT0)}, {v(vT0)}')
    p(f'v_mul_u32_u24 {v(vT0)}, 1280, {v(vT0)}')
    p(f'v_lshl_add_u32 {v(vT0)}, {v(vQ)}, 3, {v(vT0)}')
    p(f's_mul_i32 {s(sT0)}, {s(sNs)}, 160')
    p(f'v_add_u32 {v(vXo)}, {s(sT0)}, {v(vT0)}')
    stamp(p, 2)
    p('s_waitcnt vmcnt(35)')
    stamp(p, 3)
    for bsel in range(2):
        for mt in range(10):
            ad = vUe if mt % 2 == 0 else vUo_
            off = bsel * 32 * 320 + mt * 32
            p(f'ds_read_b64_tr_b16 {v(UA + 4 * mt, 2)}, {v(ad)} offset:{off}')
            p(f'ds_read_b64_tr_b16 {v(UA + 4 * mt + 2, 2)}, {v(ad)} offset:{off + 16 * 320}')
            if mt == 6:
                p('s_waitcnt lgkmcnt(6)')
        p(f's_cmp_eq_u32 {s(sW)}, 3')
        p(f's_cbranch_scc1 K3_PF{bsel}D')
        for st in ((4, 5) if bsel == 0 else (6,)):
            for ins in g2_loads(st):
                p(ins)
        p(f's_branch K3_PF{bsel}E')
        p.label(f'K3_PF{bsel}D')
        for st in ((7, 8, 9) if bsel == 0 else (10, 11)):
            for ins in d_loads(st):
                p(ins)
        p.label(f'K3_PF{bsel}E')
        p('s_waitcnt lgkmcnt(0)')

        def i2_mfma(mt):
            pq = PQ if mt % 2 == 0 else 40
            for nt in range(2):
                p(f'v_mfma_f32_16x16x32_bf16 {v(pq + 8 * nt, 4)}, {v(UA + 4 * mt, 4)}, {v(EI + 4 * nt, 4)}, 0')
                p(f'v_mfma_f32_16x16x32_bf16 {v(pq + 8 * nt + 4, 4)}, {v(UA + 4 * mt, 4)}, {v(EI + 8 + 4 * nt, 4)}, 0')

        def i2_post(mt):
            pq = PQ if mt % 2 == 0 else 40
            for nt in range(2):
                P, Q = pq + 8 * nt, pq + 8 * nt + 4
                zo = ZO + 4 * (mt % 2) + 2 * nt
                p(f'v_sub_f32 {v(P)}, {v(P)}, {v(Q + 1)}')
                p(f'v_add_f32 {v(P + 1)}, {v(P + 1)}, {v(Q)}')
                p(f'v_sub_f32 {v(P + 2)}, {v(P + 2)}, {v(Q + 3)}')
                p(f'v_add_f32 {v(P + 3)}, {v(P + 3)}, {v(Q + 2)}')
                p(f'v_cvt_pk_bf16_f32 {v(zo)}, {v(P)}, {v(P + 1)}')
                p(f'v_cvt_pk_bf16_f32 {v(zo + 1)}, {v(P + 2)}, {v(P + 3)}')
                p(f'ds_write_b64 {v(vZe if mt % 2 == 0 else vZo)}, {v(zo, 2)} offset:{(mt >> 1) * 64 + (32 * bsel + 16 * nt) * 320}')
        i2_mfma(0)
        for mt in range(10):
            if mt + 1 < 10:
                i2_mfma(mt + 1)
            i2_post(mt)
    p('s_waitcnt lgkmcnt(0)')
    stamp(p, 4)
    p('s_barrier')
    stamp(p, 5)
    for mt in range(5):
        p(f'buffer_load_dwordx2 {v(XR + 2 * mt, 2)}, {v(vXo)}, {s(SRD_X, 4)}, 0 offen offset:{32 * mt}')
    p(f's_cmp_eq_u32 {s(sW)}, 3')
    p('s_cbranch_scc1 K3_DFT_MAIN')

    def g2_mfmas(step, first):
        base = 36 * (step % G2D)
        out = []
        for nt in range(4):
            for mt in range(5):
                acc = ACC + (nt * 5 + mt) * 4
                c = '0' if first else v(acc, 4)
                out.append(f'v_mfma_f32_16x16x32_bf16 {v(acc, 4)}, {a(base + 4 * mt, 4)}, {a(base + 20 + 4 * nt, 4)}, {c}')
        return out

    pend = []
    for k in range(16):
        p(f's_waitcnt vmcnt({9 * min(G2D - 1 - (1 if pend else 0), 15 - k)})')
        for ins in interleave(g2_mfmas(k, k == 0), pend):
            p(ins)
        pend = g2_loads(k + G2D) if k + G2D < 16 else []
    p('s_branch K3_REDUCE')

    p.label('K3_DFT_MAIN', pad=4)
    ZB = 144

    def d_reads(kk):
        fs = kk % 2
        out = []
        slab = kk // 5
        for nt in range(4):
            off = (slab % 2) * SLAB + nt * 5120 + (kk % 5) * 64
            out.append(f'ds_read_b128 {v(ZB + 16 * fs + 4 * nt, 4)}, {v(vZA + slab // 2)} offset:{off}')
        return out

    def d_mfmas(kk, first):
        base, fs = 20 * (kk % DFD), kk % 2
        out = []
        for nt in range(4):
            for mt in range(5):
                acc = ACC + (nt * 5 + mt) * 4
                c = '0' if first else v(acc, 4)
                out.append(f'v_mfma_f32_16x16x32_bf16 {v(acc, 4)}, {a(base + 4 * mt, 4)}, {v(ZB + 16 * fs + 4 * nt, 4)}, {c}')
        return out

    for ins in d_reads(0):
        p(ins)
    pend = []
    for kk in range(20):
        p(f's_waitcnt vmcnt({5 * min(DFD - 1 - (1 if pend else 0), 19 - kk)}) lgkmcnt(0)')
        others = (d_reads(kk + 1) if kk + 1 < 20 else []) + pend
        for ins in interleave(d_mfmas(kk, kk == 0), others):
            p(ins)
        pend = d_loads(kk + DFD) if kk + DFD < 20 else []
    p(f's_mov_b32 {s(sRing)}, 0')

    p.label('K3_REDUCE', pad=12)
    stamp(p, 6)
    PJ = 66
    PJ = 68
    vRW, vRR = 35, 36
    p(f'v_add_u32 {v(vRW)}, {s(sRing)}, {v(vL16)}')
    p(f's_mul_i32 {s(sT0)}, {s(sW)}, 5120')
    p(f'v_add_u32 {v(vRR)}, {s(sT0)}, {v(vL16)}')
    p(f'v_add_u32 {v(vRR + 1)}, {RING0}, {v(vRR)}')
    for j in range(4):
        p(f's_cmp_eq_u32 {s(sW)}, {j}')
        p(f's_cbranch_scc1 K3_OWN{j}')
        for mt in range(5):
            p(f'ds_write_b128 {v(vRW)}, {v(ACC + (j * 5 + mt) * 4, 4)} offset:{(j * 5 + mt) * 1024}')
        p(f's_branch K3_RW{j}')
        p.label(f'K3_OWN{j}')
        for r in range(20):
            p(f'v_mov_b32 {v(PJ + 20 * j + r)}, {v(ACC + j * 20 + r)}')
        p.label(f'K3_RW{j}')
    p('s_waitcnt lgkmcnt(0)')
    p('s_barrier')
    for j in range(4):
        p(f's_cmp_eq_u32 {s(sW)}, {j}')
        p(f's_cbranch_scc1 K3_RR{j}')
        for mt in range(5):
            if j < 3:
                p(f'ds_read_b128 {v(PJ + 20 * j + 4 * mt, 4)}, {v(vRR + 1)} offset:{j * SLAB + mt * 1024}')
            else:
                p(f'ds_read_b128 {v(PJ + 20 * j + 4 * mt, 4)}, {v(vRR)} offset:{mt * 1024}')
        p.label(f'K3_RR{j}')
    stamp(p, 7)
    vMask, vL2, vOne = 37, 38, 40
    p(f'v_mov_b32 {v(vMask)}, 0xffff0000')
    p(f'v_mov_b32 {v(vL2)}, {flit(-LOG2E)}')
    p(f'v_mov_b32 {v(vOne)}, 1.0')
    p('s_waitcnt vmcnt(0) lgkmcnt(0)')
    tb = 160
    for mt in range(5):
        o = tb + 16 * (mt % 4) + 12
        for hh in range(2):
            t = tb + 16 * (mt % 4) + 6 * hh
            G, E = t, t + 2
            r = 4 * mt + 2 * hh
            p(f'v_pk_add_f32 {v(G, 2)}, {v(PJ + r, 2)}, {v(PJ + 20 + r, 2)}')
            p(f'v_pk_add_f32 {v(G, 2)}, {v(G, 2)}, {v(PJ + 40 + r, 2)}')
            p(f'v_cvt_pk_bf16_f32 {v(t + 4)}, {v(G)}, {v(G + 1)}')
            p(f'v_cvt_pk_bf16_f32 {v(t + 5)}, {v(PJ + 60 + r)}, {v(PJ + 60 + r + 1)}')
            p(f'v_lshlrev_b32 {v(G)}, 16, {v(t + 4)}')
            p(f'v_and_b32 {v(G + 1)}, {v(vMask)}, {v(t + 4)}')
            p(f'v_pk_mul_f32 {v(E, 2)}, {v(G, 2)}, {v(vL2, 2)} op_sel_hi:[1,0]')
            p(f'v_exp_f32 {v(E)}, {v(E)}')
            p(f'v_exp_f32 {v(E + 1)}, {v(E + 1)}')
            p(f'v_pk_add_f32 {v(E, 2)}, {v(E, 2)}, {v(vOne, 2)} op_sel_hi:[1,0]')
            p(f'v_rcp_f32 {v(E)}, {v(E)}')
            p(f'v_rcp_f32 {v(E + 1)}, {v(E + 1)}')
            p(f'v_pk_mul_f32 {v(G, 2)}, {v(G, 2)}, {v(E, 2)}')
            p(f'v_cvt_pk_bf16_f32 {v(t + 4)}, {v(G)}, {v(G + 1)}')
            p(f'v_lshlrev_b32 {v(G)}, 16, {v(t + 4)}')
            p(f'v_and_b32 {v(G + 1)}, {v(vMask)}, {v(t + 4)}')
            p(f'v_lshlrev_b32 {v(E)}, 16, {v(t + 5)}')
            p(f'v_and_b32 {v(E + 1)}, {v(vMask)}, {v(t + 5)}')
            p(f'v_pk_mul_f32 {v(G, 2)}, {v(G, 2)}, {v(E, 2)}')
            p(f'v_cvt_pk_bf16_f32 {v(t + 4)}, {v(G)}, {v(G + 1)}')
            p(f'v_lshlrev_b32 {v(G)}, 16, {v(t + 4)}')
            p(f'v_and_b32 {v(G + 1)}, {v(vMask)}, {v(t + 4)}')
            p(f'v_lshlrev_b32 {v(E)}, 16, {v(XR + 2 * mt + hh)}')
            p(f'v_and_b32 {v(E + 1)}, {v(vMask)}, {v(XR + 2 * mt + hh)}')
            p(f'v_pk_add_f32 {v(G, 2)}, {v(G, 2)}, {v(E, 2)}')
            p(f'v_cvt_pk_bf16_f32 {v(o + hh)}, {v(G)}, {v(G + 1)}')
        p(f'buffer_store_dwordx2 {v(o, 2)}, {v(vXo)}, {s(SRD_OUT, 4)}, 0 offen offset:{32 * mt}')
    if DIAG:
        p('s_waitcnt vmcnt(0)')
    stamp(p, 8)
    stamp(p, 9, True)
    diag_dump(p, 2, sW)
    p.label('K3_END')
    p('s_endpgm')
    return dict(name=name, grid=K3_GRID, block=256, lds=RING0 + 3 * SLAB, vgpr=512, accum=256, sgpr=102 if DIAG else 56)
```
